```python
import torch

def _softmax(x, axis=-1):
    return torch.softmax(x, dim=axis)
def _gelu(x):
    return torch.nn.functional.gelu(x, approximate="tanh")
def _silu(x):
    return torch.nn.functional.silu(x)
def _sigmoid(x):
    return torch.sigmoid(x)
def _layernorm(x, axis=-1, eps=1e-5):
    m = x.mean(dim=axis, keepdim=True)
    v = x.var(dim=axis, keepdim=True, unbiased=False)
    return (x - m) / torch.sqrt(v + eps)
def _scatter_add(tgt, idx, src, axis=0):
    return tgt.clone().index_add_(axis, idx, src)
def _segment_sum(src, seg, n):
    out = torch.zeros((n,) + src.shape[1:], dtype=src.dtype)
    return out.index_add_(0, seg, src)
def _pad(x, pw):
    flat = tuple(v for pair in reversed(pw) for v in pair)
    return torch.nn.functional.pad(x, flat)

kernel_name = 'standalone__hybrid_graph_tf_exphormer__graph'

def setup_inputs():

    _w = (lambda a: (lambda t: t.to(torch.bfloat16) if t.is_floating_point() else t)(torch.as_tensor(a)))
    N, deg, D = 50000, 16, 64
    E = N * deg
    exp_deg = 4
    Ee = N * exp_deg
    src = (lambda lo, hi, *s: torch.randint(lo, hi, s))(0, N, E).to(torch.int64)
    dst = (lambda lo, hi, *s: torch.randint(lo, hi, s))(0, N, E).to(torch.int64)
    esrc = (lambda lo, hi, *s: torch.randint(lo, hi, s))(0, N, Ee).to(torch.int64)
    edst = torch.repeat_interleave(torch.arange(N), exp_deg).to(torch.int64)
    deg_cnt = torch.bincount(dst, minlength=N).to(float) + 1.0
    return {
        "x": _w((lambda *s: torch.randn(*s, dtype=torch.bfloat16) * 0.05)(N, D)),
        "src": _w(src),
        "dst": _w(dst),
        "esrc": _w(esrc),
        "edst": _w(edst),
        "deg_inv_sqrt": _w(1.0 / (lambda _x: torch.sqrt(torch.as_tensor(_x)))(deg_cnt)),
        "w_l": _w((lambda *s: torch.randn(*s, dtype=torch.bfloat16) * 0.05)(D, D)),
        "wq": _w((lambda *s: torch.randn(*s, dtype=torch.bfloat16) * 0.05)(D, D)),
        "wk": _w((lambda *s: torch.randn(*s, dtype=torch.bfloat16) * 0.05)(D, D)),
        "wv": _w((lambda *s: torch.randn(*s, dtype=torch.bfloat16) * 0.05)(D, D)),
    }

def reference(x, src, dst, esrc, edst, deg_inv_sqrt, w_l, wq, wk, wv):
    N, D = x.shape
    h = x @ w_l
    msg = h[src] * deg_inv_sqrt[src, None] * deg_inv_sqrt[dst, None]
    h_local = _segment_sum(msg, dst, N)
    q = x @ wq
    k = x @ wk
    v = x @ wv
    e = (q[edst] * k[esrc]).sum(-1) * (D ** -0.5)
    exp_e = torch.exp(e)
    denom = _segment_sum(exp_e[:, None], edst, N)[:, 0] + 1e-9
    alpha = exp_e / denom[edst]
    h_attn = _segment_sum(alpha[:, None] * v[esrc], edst, N)
    return h_local + h_attn
```

```python
import sys

N = 50000
E = 800000
NB = 256
BK = 196
CH = 3136
TC = 288
OOB = 0x7f000000

NPC = 1280
DPG = 0
OFT = DPG + NB * NPC * 16
NREP, NSH = int(__import__('os').environ.get('NREP', 16)), int(__import__('os').environ.get('NSH', 16))
BAR = OFT + NB * 1024
WS_END = BAR + 256 * 128
TSG = WS_END
WS_REC = TSG + (1 << 20)

DIS = 0
IMG = 98 * 1024
CN1 = IMG + NPC * 16
POF = CN1 + 1024
WQK = POF + 1024 + 128
WLVA = WQK + 16384
EAA = WLVA + 16384
LDS_A = EAA + 4096
assert WLVA % 128 == 0
assert WQK % 128 == 0
RINGW = 6144
WM = 16 * RINGW
EA = WM + 24576
EL = EA + 4096
OH = EL + 16 * TC * 4
CNT = OH + 16 * TC * 2
LDS_C = CNT + 128
LDS = max(LDS_A, LDS_C)
assert LDS <= 163840, LDS


class A:
    def __init__(self):
        self.lines = []
        self.uid = 0
    def __call__(self, s):
        for ln in s.strip("\n").split("\n"):
            ln = ln.strip()
            if ln:
                self.lines.append("    " + ln)
    def label(self, name):
        self.lines.append(name + ":")
    def new(self, base):
        self.uid += 1
        return f"{base}_{self.uid}"
    def text(self):
        return "\n".join(self.lines) + "\n"

def vr(a, n=1):
    return f"v{a}" if n == 1 else f"v[{a}:{a+n-1}]"

S_W = 3
SX, SWS, SO, ST, ST2 = 4, 8, 12, 16, 20
P_SRC, P_DST, P_ES, P_DIS, P_WS, P_X, P_WL, P_WQ, P_WK, P_WV, P_OUT = 24, 26, 28, 30, 32, 34, 36, 38, 40, 42, 44
P_DBG = 98
S_NODE0, S_NVAL, S_PERM, S_15, S_128, S_RING, S_NST, S_REM = 46, 47, 48, 49, 50, 51, 52, 53
S_T0, S_T1, S_T2, S_T3 = 54, 55, 56, 57
S_MODE, S_CNT, S_BK, S_OVCH, S_SBI, S_OVJ = 58, 59, 60, 61, 62, 63
S_HL = 98
S_MA, S_B2, S_U, S_EX, S_VM = 64, 72, 74, 76, 78
S_CCNT, S_CEL, S_COH, S_CTC = 80, 81, 82, 83
S_MSK = 84
S_TS = 100
A_VAL = 84
A_WR = 86
A_OVF = 94
A_TMP = 96
A_EX = 76

V_ACL, V_ACA, V_A, V_S, V_VO, V_EN, V_Q, V_P2 = 0, 16, 32, 48, 60, 72, 84, 92
V_TR, V_CH, V_E, V_O, V_SH, V_DIS, V_LANE, V_TID, V_T = 108, 112, 114, 115, 116, 117, 118, 119, 120
V_P2A, V_P2B, V_WA, V_TSV = 124, 125, 126, 127
V_SW = 0
V_RK, V_POS = 32, 40
V_XB = 48
XB0, XB1 = 68, 76
PO, PA, VWK, VDK = 48, 49, 50, 51
V_MT = 72
V_INI = 83
V_POFF = 81
V_ES = 82

def stamp(a, i, opts, sset=0):
    if opts.get("ts") and (i == 0 or opts.get("tss", 0) == sset):
        a(f"""
        s_memrealtime s[{S_TS}:{S_TS+1}]
        s_waitcnt lgkmcnt(0)
        v_writelane_b32 v{V_TSV}, s{S_TS}, {2*i}
        v_writelane_b32 v{V_TSV}, s{S_TS+1}, {2*i+1}
        """)

def dstamp(a, i, opts, neg=False):
    if not opts.get("dbgts"):
        return
    lab = a.new("DS")
    a(f"""
    s_cmp_lg_u32 s{S_W}, 0
    s_cbranch_scc1 {lab}
    s_memrealtime s[{S_TS}:{S_TS+1}]
    s_waitcnt lgkmcnt(0)
    """)
    if neg:
        a(f"s_not_b32 s{S_TS}, s{S_TS}")
    a(f"""
    s_mov_b64 s[{S_TS+0}:{S_TS+1}], s[{S_TS}:{S_TS+1}]
    v_writelane_b32 v{V_TSV}, s{S_TS}, {i}
    """)
    a.label(lab)

def dflush(a, opts, n):
    if not opts.get("dbgts"):
        return
    lab = a.new("DF")
    a(f"""
    s_cmp_lg_u32 s{S_W}, 0
    s_cbranch_scc1 {lab}
    s_load_dwordx2 s[{S_T0}:{S_T0+1}], s[0:1], 88
    v_lshlrev_b32 v{V_T}, 2, v{V_LANE}
    s_waitcnt lgkmcnt(0)
    s_mov_b64 exec, {((1 << (n+1)) - 1) & ~1}
    global_atomic_umax v{V_T}, v{V_TSV}, s[{S_T0}:{S_T0+1}]
    s_waitcnt vmcnt(0)
    s_mov_b64 exec, -1
    """)
    a.label(lab)

def stamps_flush(a, opts, n):
    if not opts.get("ts"):
        return
    vt = V_T
    a(f"""
    s_lshl_b32 s{S_T0}, s2, 4
    s_add_u32 s{S_T0}, s{S_T0}, s{S_W}
    s_lshl_b32 s{S_T0}, s{S_T0}, 7
    s_add_u32 s{S_T0}, s{S_T0}, {TSG}
    v_lshlrev_b32 v{vt}, 2, v{V_LANE}
    s_mov_b64 exec, {(1 << (2*n)) - 1}
    s_nop 4
    buffer_store_dword v{V_TSV}, v{vt}, s[{SWS}:{SWS+3}], s{S_T0} offen
    s_waitcnt vmcnt(0)
    """)

def srd(a, dst, p, nrec):
    a(f"""
    s_mov_b32 s{dst}, s{p}
    s_and_b32 s{dst+1}, s{p+1}, 0xffff
    s_mov_b32 s{dst+2}, {nrec}
    s_mov_b32 s{dst+3}, 0x00020000
    """)

def entries_read(a, oe, oo):
    a(f"""
    ds_read_b128 {vr(V_EN,4)}, v{V_E} offset:{oe}
    ds_read_b128 {vr(V_EN+4,4)}, v{V_E} offset:{oe+64}
    ds_read_b64 {vr(V_EN+8,2)}, v{V_O} offset:{oo}
    ds_read_b64 {vr(V_EN+10,2)}, v{V_O} offset:{oo+32}
    """)

def voff(a, vset):
    vo = V_VO + 4 * vset
    for q in range(4):
        a(f"v_cndmask_b32 v{vo+q}, v{V_EN+2*q}, v{V_EN+2*q+1}, s[{S_U}:{S_U+1}]")
    for q in range(4):
        a(f"v_mad_u32_u16 v{vo+q}, v{vo+q}, s{S_128}, v{V_CH+(q&1)}")

def sbuild(a, sset):
    s = V_S + 4 * sset
    for p in range(4):
        a(f"v_pk_lshlrev_b16 v{V_EN+8+p}, v{V_SH}, v{V_EN+8+p}")
    for p in range(4):
        a(f"v_perm_b32 v{s+p}, v{V_EN+2*p+1}, v{V_EN+2*p}, s{S_PERM}")
    for p in range(4):
        a(f"v_pk_ashrrev_i16 v{V_EN+8+p}, s{S_15}, v{V_EN+8+p}")
    for p in range(4):
        a(f"v_and_b32 v{s+p}, v{s+p}, v{V_EN+8+p}")

def dma(a, vset, h, pair, fill=None):
    vo = V_VO + 4 * vset + 2 * h
    a(f"s_add_u32 m0, s{S_RING}, {pair*2048}")
    a(fill[0] if fill else "s_nop 0")
    a(f"buffer_load_dwordx4 v{vo}, s[{SX}:{SX+3}], 0 offen lds")
    a(f"s_add_u32 m0, s{S_RING}, {pair*2048+1024}")
    a(fill[1] if fill else "s_nop 0")
    a(f"buffer_load_dwordx4 v{vo+1}, s[{SX}:{SX+3}], 0 offen lds")

def tr(a, h, pair):
    for t in range(4):
        a(f"ds_read_b64_tr_b16 {vr(V_A+4*t+2*h,2)}, v{V_TR+t} offset:{pair*2048}")

def mfma_agg(a, acc, sreg, zero=False):
    for t in range(4):
        c = "0" if zero else vr(acc+4*t,4)
        a(f"v_mfma_f32_16x16x32_bf16 {vr(acc+4*t,4)}, {vr(V_A+4*t,4)}, {vr(sreg,4)}, {c}")

def cond_dma(a, vset, h, pair, step):
    lab = a.new("SKD")
    a(f"s_cmp_le_u32 s{S_NST}, {step}\ns_cbranch_scc1 {lab}")
    dma(a, vset, h, pair)
    a.label(lab)

def cond_dma_l0h1(a, vset, pair):
    lab, go = a.new("SKD"), a.new("SKG")
    a(f"""
    s_cmp_eq_u32 s{S_NST}, 0
    s_cbranch_scc1 {lab}
    s_cmp_ge_u32 s{S_NST}, 2
    s_cbranch_scc1 {go}
    s_cmp_eq_u32 s{S_HL}, 0
    s_cbranch_scc1 {lab}
    """)
    a.label(go)
    dma(a, vset, 1, pair)
    a.label(lab)

def prefill_lists(a):
    L, T = V_LANE, V_T
    a(f"""
    v_mov_b32 v{V_A}, 0xffff
    v_mov_b32 v{V_A+1}, 0xffff
    v_mov_b32 v{V_A+2}, 0xffff
    v_mov_b32 v{V_A+3}, 0xffff
    s_mul_i32 s{S_T0}, s{S_W}, {TC*4}
    s_add_u32 s{S_T0}, s{S_T0}, {EL}
    v_lshl_add_u32 v{T}, v{L}, 4, s{S_T0}
    s_lshl_b32 s{S_T1}, s{S_W}, 2
    s_add_u32 s{S_T1}, s{S_T1}, {CNT}
    v_mov_b32 v{T+1}, 0
    v_mov_b32 v{T+2}, s{S_T1}
    ds_write_b128 v{T}, {vr(V_A,4)}
    s_mov_b64 exec, 0xff
    ds_write_b128 v{T}, {vr(V_A,4)} offset:1024
    s_mov_b64 exec, 1
    ds_write_b32 v{T+2}, v{T+1}
    s_mov_b64 exec, -1
    """)

def bin_group(a, recs, skip):
    T = V_T
    a(f"v_mov_b32 v{T}, 1")
    for (r, sw, lb, by) in recs:
        a(f"""
        v_bfe_u32 v{V_POS+r}, v{lb}, {8*by}, 4
        v_bfe_u32 v{V_RK+r}, v{lb}, {8*by+4}, 4
        v_cmp_ne_u32 s[{S_MSK+2*r}:{S_MSK+2*r+1}], 15, v{V_POS+r}
        v_lshl_add_u32 v{V_EN+r}, v{V_RK+r}, 2, s{S_CCNT}
        """)
    for (r, sw, lb, by) in recs:
        a(f"s_mov_b64 exec, s[{S_MSK+2*r}:{S_MSK+2*r+1}]")
        a(f"ds_add_rtn_u32 v{V_EN+r}, v{V_EN+r}, v{T}")
    a("s_mov_b64 exec, -1")
    for (r, sw, lb, by) in recs:
        a(f"v_lshlrev_b32 v{V_POS+r}, v{V_POS+r}, 1")
    n = len(recs)
    for k, (r, sw, lb, by) in enumerate(recs):
        a(f"s_waitcnt lgkmcnt({n-1-k})")
        a(f"""
        v_min_u32 v{V_EN+r}, {TC-1}, v{V_EN+r}
        v_mad_u32_u24 v{V_RK+r}, v{V_RK+r}, s{S_CTC}, v{V_EN+r}
        v_lshl_add_u32 v{V_EN+r}, v{V_RK+r}, 2, s{S_CEL}
        v_lshl_add_u32 v{V_RK+r}, v{V_RK+r}, 1, s{S_COH}
        """)
    for (r, sw, lb, by) in recs:
        lab = a.new("BSK")
        a(f"s_mov_b64 exec, s[{S_MSK+2*r}:{S_MSK+2*r+1}]")
        if skip:
            a(f"s_cbranch_execz {lab}")
        a(f"""
        ds_write_b32 v{V_EN+r}, v{sw}
        ds_write_b16 v{V_RK+r}, v{V_POS+r}
        """)
        if skip:
            a.label(lab)
    a("s_mov_b64 exec, -1")

def count_read(a):
    L, T = V_LANE, V_T
    a(f"""
    v_and_b32 v{T}, 31, v{L}
    v_lshl_add_u32 v{T}, v{T}, 2, s{S_CCNT}
    ds_read_b32 v{T+1}, v{T}
    v_and_b32 v{T}, 16, v{L}
    v_cmp_eq_u32 s[{S_VM}:{S_VM+1}], 0, v{T}
    s_waitcnt lgkmcnt(0)
    v_readlane_b32 s{S_CNT}, v{T+1}, s{S_W}
    v_cmp_lt_u32 vcc, s{S_CTC}, v{T+1}
    s_and_b64 vcc, vcc, s[{S_VM}:{S_VM+1}]
    s_add_u32 s{S_NST}, s{S_CNT}, 31
    s_lshr_b32 s{S_NST}, s{S_NST}, 5
    s_cmp_lg_u64 vcc, 0
    s_cselect_b32 s{S_NST}, 0, s{S_NST}
    s_cselect_b32 s{S_MODE}, 2, 0
    s_sub_u32 s{S_HL}, s{S_CNT}, 1
    s_and_b32 s{S_HL}, s{S_HL}, 16
    """)

def p1(a):
    for half in range(2):
        for tt in range(2):
            for s in range(2):
                a(f"ds_read_b128 {vr(V_A+8*tt+4*s,4)}, v{V_WA} offset:{((2*half+tt)*2+s)*1024}")
        for tt in range(2):
            acc = V_ACA + 4 * (2 * half + tt)
            a(f"s_waitcnt lgkmcnt({2 if tt == 0 else 0})")
            a(f"v_mfma_f32_16x16x32_bf16 {vr(acc,4)}, {vr(V_A+8*tt,4)}, {vr(XB0,4)}, 0")
            a(f"v_mfma_f32_16x16x32_bf16 {vr(acc,4)}, {vr(V_A+8*tt+4,4)}, {vr(XB1,4)}, {vr(acc,4)}")

def p1_pack(a):
    for s in range(2):
        for h in range(2):
            acc = V_ACA + 4 * (2 * s + h)
            a(f"v_cvt_pk_bf16_f32 v{V_Q+4*s+2*h}, v{acc}, v{acc+1}")
            a(f"v_cvt_pk_bf16_f32 v{V_Q+4*s+2*h+1}, v{acc+2}, v{acc+3}")

def attn_reads(a, pairA, pairB):
    for mtl, pair in ((0, pairA), (1, pairB)):
        a(f"ds_read_b128 {vr(V_P2+8*mtl,4)}, v{V_P2A} offset:{pair*2048}")
        a(f"ds_read_b128 {vr(V_P2+8*mtl+4,4)}, v{V_P2B} offset:{pair*2048}")
    tr(a, 0, pairA)
    tr(a, 1, pairB)

def attn_compute(a, ks, keep_d1=False):
    D0, D1 = V_S + 8, (V_VO + 8 if keep_d1 else V_VO + 4)
    T = V_T
    a(f"""
    v_mfma_f32_16x16x32_bf16 {vr(D0,4)}, {vr(V_P2,4)}, {vr(V_Q,4)}, 0
    v_mfma_f32_16x16x32_bf16 {vr(D1,4)}, {vr(V_P2+8,4)}, {vr(V_Q,4)}, 0
    v_mfma_f32_16x16x32_bf16 {vr(D0,4)}, {vr(V_P2+4,4)}, {vr(V_Q+4,4)}, {vr(D0,4)}
    v_mfma_f32_16x16x32_bf16 {vr(D1,4)}, {vr(V_P2+12,4)}, {vr(V_Q+4,4)}, {vr(D1,4)}
    s_mov_b32 s{S_T0}, 0x3e38aa3b
    s_mov_b32 s{S_T1}, 0x3089705f
    s_nop 6
    """)
    for r in range(4):
        a(f"v_cndmask_b32 v{D0+r}, v{D0+r}, v{D1+r}, s[{S_B2}:{S_B2+1}]")
    for r in range(4):
        a(f"v_mul_f32 v{D0+r}, s{S_T0}, v{D0+r}")
    for r in range(4):
        a(f"v_exp_f32 v{D0+r}, v{D0+r}")
    a(f"""
    s_nop 0
    v_add_f32 v{T}, v{D0}, v{D0+1}
    v_add_f32 v{T+1}, v{D0+2}, v{D0+3}
    v_add_f32 v{T}, v{T}, v{T+1}
    v_add_f32 v{T}, s{S_T1}, v{T}
    v_rcp_f32 v{T}, v{T}
    s_nop 0
    v_mul_f32 v{D0}, v{T}, v{D0}
    v_mul_f32 v{D0+1}, v{T}, v{D0+1}
    v_mul_f32 v{D0+2}, v{T}, v{D0+2}
    v_mul_f32 v{D0+3}, v{T}, v{D0+3}
    v_cvt_pk_bf16_f32 v{T}, v{D0}, v{D0+2}
    v_cvt_pk_bf16_f32 v{T+1}, v{D0+1}, v{D0+3}
    v_cndmask_b32 v{D1}, 0, v{T}, s[{S_MA+4*ks}:{S_MA+4*ks+1}]
    v_cndmask_b32 v{D1+1}, 0, v{T+1}, s[{S_MA+4*ks}:{S_MA+4*ks+1}]
    v_cndmask_b32 v{D1+2}, 0, v{T}, s[{S_MA+4*ks+2}:{S_MA+4*ks+3}]
    v_cndmask_b32 v{D1+3}, 0, v{T+1}, s[{S_MA+4*ks+2}:{S_MA+4*ks+3}]
    s_nop 1
    """)
    mfma_agg(a, V_ACA, D1, zero=(ks == 0))

PRIO = 1
A0EARLY = 1
VOWN, XBA, VSIG = 36, 38, 40
def ea_stage(a):
    L, T = V_LANE, V_T
    a(f"""
    s_tmp_placeholder
    """.replace("s_tmp_placeholder", f"s_lshl_b32 s{S_T0}, s{S_W}, 8"))
    a(f"""
    s_add_u32 s{S_T0}, s{S_T0}, {EAA}
    v_lshl_add_u32 v{T+2}, v{L}, 2, s{S_T0}
    v_lshrrev_b32 v{T}, 2, v{L}
    v_cmp_gt_u32 vcc, s{S_NVAL}, v{T}
    v_mov_b32 v{T}, 0xffff
    v_lshrrev_b32 v{T+1}, 4, v{L}
    v_bfe_u32 v{T+3}, v{L}, 3, 1
    v_cndmask_b32 v{T}, v{T}, v{V_ES}, vcc
    ds_write_b32 v{T+2}, v{T}
    v_lshlrev_b32 v{T+1}, 4, v{T+1}
    v_lshl_add_u32 v{T+1}, v{T+3}, 3, v{T+1}
    v_add_u32 v{T+1}, s{S_T0}, v{T+1}
    """)
    for ks in range(2):
        for h in range(2):
            a(f"ds_read_b64 {vr(V_VO+4*ks+2*h,2)}, v{T+1} offset:{128*ks+64*h}")
    a(f"""
    v_lshrrev_b32 v{T}, 3, v{L}
    v_add_u32 v{T}, s{S_NODE0}, v{T}
    v_lshl_add_u32 v{VOWN}, v{T}, 7, v{V_CH}
    v_add_u32 v{T}, 8, v{T}
    v_lshl_add_u32 v{VOWN+1}, v{T}, 7, v{V_CH+1}
    v_and_b32 v{T}, 15, v{L}
    v_bfe_u32 v{T+1}, v{L}, 3, 1
    v_bfe_u32 v{T+2}, v{L}, 1, 1
    v_lshl_add_u32 v{T+1}, v{T+1}, 1, v{T+2}
    v_lshlrev_b32 v{T+1}, 1, v{T+1}
    v_lshrrev_b32 v{T+2}, 4, v{L}
    v_xor_b32 v{T+1}, v{T+1}, v{T+2}
    v_lshlrev_b32 v{T+1}, 4, v{T+1}
    v_lshl_add_u32 v{T}, v{T}, 7, v{T+1}
    v_add_u32 v{XBA}, s{S_RING}, v{T}
    v_xor_b32 v{XBA+1}, 64, v{XBA}
    s_waitcnt lgkmcnt(0)
    """)
    for q in range(8):
        a(f"v_mad_u32_u16 v{V_VO+q}, v{V_VO+q}, s{S_128}, v{V_CH+(q&1)}")

def local_steps(a):
    a(f"""
    s_cmp_eq_u32 s{S_NST}, 0
    s_cbranch_scc1 K_LOCAL_DONE
    s_cmp_eq_u32 s{S_NST}, 1
    s_cbranch_scc1 K_LAST0
    s_mov_b32 s{S_REM}, s{S_NST}
    s_cmp_eq_u32 s{S_NST}, 2
    s_cbranch_scc1 K_PEN0
    """)
    for ph in range(3):
        p0, p1_ = (1 + 2 * ph) % 3, (2 + 2 * ph) % 3
        a.label(f"K_FULL{ph}")
        if PRIO:
            lp = a.new("PR")
            if PRIO == 1:
                a(f"s_cmp_ge_u32 s{S_REM}, 5\ns_cbranch_scc1 {lp}\ns_setprio 2")
                a.label(lp)
            else:
                lq = a.new("PR")
                t1, t2 = {2: (6, 4), 3: (5, 4), 4: (7, 5), 5: (6, 5)}[PRIO]
                a(f"s_cmp_ge_u32 s{S_REM}, {t1}\ns_cbranch_scc1 {lp}\ns_setprio 2\ns_cmp_ge_u32 s{S_REM}, {t2}\ns_cbranch_scc1 {lp}\ns_setprio 1")
                a.label(lp)
        a("s_waitcnt vmcnt(4)")
        tr(a, 0, p0)
        entries_read(a, (ph + 2) * 128, (ph + 2) * 64)
        a("s_waitcnt lgkmcnt(4)")
        dma(a, ph, 1, p0, fill=(f"s_sub_u32 s{S_REM}, s{S_REM}, 1", "s_nop 0"))
        a("s_waitcnt vmcnt(4)")
        tr(a, 1, p1_)
        a("s_waitcnt lgkmcnt(4)")
        voff(a, (ph + 1) % 3)
        sbuild(a, (ph + 2) % 3)
        a("s_waitcnt lgkmcnt(0)")
        if ph == 2:
            dma(a, (ph + 1) % 3, 0, p1_, fill=(f"v_add_u32 v{V_E}, 384, v{V_E}", f"v_add_u32 v{V_O}, 192, v{V_O}"))
        else:
            dma(a, (ph + 1) % 3, 0, p1_)
        mfma_agg(a, V_ACL, V_S + 4 * ph)
        a(f"s_cmp_eq_u32 s{S_REM}, 2\ns_cbranch_scc1 K_PEN{(ph+1)%3}")
        if ph == 2:
            a("s_branch K_FULL0")
    for ph in range(3):
        p0, p1_ = (1 + 2 * ph) % 3, (2 + 2 * ph) % 3
        a.label(f"K_PEN{ph}")
        if PRIO: a("s_setprio 1" if PRIO == 1 else "s_setprio 0")
        a("s_waitcnt vmcnt(4)")
        tr(a, 0, p0)
        a("s_waitcnt lgkmcnt(0)")
        l0, l1 = a.new("PH"), a.new("PH")
        a(f"s_cmp_eq_u32 s{S_HL}, 0\ns_cbranch_scc1 {l0}")
        dma(a, ph, 1, p0)
        a(f"s_waitcnt vmcnt(4)\ns_branch {l1}")
        a.label(l0)
        a("s_waitcnt vmcnt(2)")
        a.label(l1)
        tr(a, 1, p1_)
        a("s_waitcnt lgkmcnt(0)")
        mfma_agg(a, V_ACL, V_S + 4 * ph)
        a(f"s_branch K_LAST{(ph+1)%3}")
    for ph in range(3):
        p0, p1_ = (1 + 2 * ph) % 3, (2 + 2 * ph) % 3
        a.label(f"K_LAST{ph}")
        if PRIO: a("s_setprio 0")
        l0, l1 = a.new("LH"), a.new("LH")
        a(f"s_cmp_eq_u32 s{S_HL}, 0\ns_cbranch_scc1 {l0}\ns_waitcnt vmcnt(2)\ns_branch {l1}")
        a.label(l0)
        a("s_waitcnt vmcnt(0)")
        a.label(l1)
        tr(a, 0, p0)
        a("s_waitcnt vmcnt(0)")
        tr(a, 1, p1_)
        a("s_waitcnt lgkmcnt(0)")
        mfma_agg(a, V_ACL, V_S + 4 * ph)
        if ph < 2:
            a("s_branch K_LOCAL_DONE")

def list_addr_init(a):
    L, T = V_LANE, V_T
    a(f"""
    s_mul_i32 s{S_T0}, s{S_W}, {TC*4}
    s_add_u32 s{S_T0}, s{S_T0}, {EL}
    v_lshrrev_b32 v{T}, 4, v{L}
    v_lshl_add_u32 v{V_E}, v{T}, 4, s{S_T0}
    s_mul_i32 s{S_T0}, s{S_W}, {TC*2}
    s_add_u32 s{S_T0}, s{S_T0}, {OH}
    v_lshl_add_u32 v{V_O}, v{T}, 3, s{S_T0}
    """)

def tile_from_dst(a, vd, vT, vL):
    a(f"""
    v_lshlrev_b32 v{vT}, 8, v{vd}
    s_mov_b32 s{S_T3}, 1369569
    v_mul_hi_u32_u24 v{vT}, s{S_T3}, v{vT}
    v_lshlrev_b32 v{vL}, 2, v{vd}
    s_mov_b32 s{S_T3}, -49
    v_mad_i32_i24 v{vL}, v{vT}, s{S_T3}, v{vL}
    v_lshrrev_b32 v{vL}, 2, v{vL}
    """)

def slow_path(a):
    L, T = V_LANE, V_T
    SW, LB = V_P2, V_P2 + 1
    a(f"""
    s_cmp_eq_u32 s{S_MODE}, 0
    s_cbranch_scc1 K_EPI
    s_cmp_eq_u32 s{S_MODE}, 1
    s_cbranch_scc1 K_SLOW_TOP
    s_cmp_eq_u32 s{S_MODE}, 3
    s_cselect_b32 s{S_SBI}, 1, 0
    s_mov_b32 s{S_OVCH}, 0
    s_mov_b32 s{S_OVJ}, 0
    """)
    a.label("K_SLOW_TOP")
    a("s_barrier")
    prefill_lists(a)
    list_addr_init(a)
    a(f"""
    v_mov_b32 v{LB}, -1
    v_mov_b32 v{SW}, 0xffff
    s_cmp_lg_u32 s{S_SBI}, 0
    s_cbranch_scc1 K_SLOW_RAW
    """)
    a.label("K_SLOW_CH")
    a(f"""
    s_cmp_ge_u32 s{S_OVCH}, {NB}
    s_cbranch_scc1 K_EPI_SLOW
    s_lshl_b32 s{S_T0}, s{S_OVCH}, 10
    s_lshl_b32 s{S_T1}, s{S_BK}, 2
    s_add_u32 s{S_T0}, s{S_T0}, s{S_T1}
    s_add_u32 s{S_T0}, s{S_T0}, {OFT}
    v_mov_b32 v{T}, 0
    buffer_load_dword v{T+1}, v{T}, s[{SWS}:{SWS+3}], s{S_T0} offen sc1
    s_waitcnt vmcnt(0)
    v_readfirstlane_b32 s{S_T1}, v{T+1}
    s_nop 3
    s_lshr_b32 s{S_T2}, s{S_T1}, 16              ; pieces
    s_and_b32 s{S_T1}, s{S_T1}, 0xffff
    s_cmp_lt_u32 s{S_OVJ}, s{S_T2}
    s_cbranch_scc1 K_SLOW_CH1
    s_add_u32 s{S_OVCH}, s{S_OVCH}, 1
    s_mov_b32 s{S_OVJ}, 0
    s_branch K_SLOW_CH
    """)
    a.label("K_SLOW_CH1")
    a(f"""
    v_lshrrev_b32 v{T}, 2, v{V_TID}
    v_add_u32 v{T}, s{S_OVJ}, v{T}
    v_and_b32 v{T+2}, 3, v{V_TID}                ; slot
    v_cmp_gt_u32 s[{S_VM}:{S_VM+1}], s{S_T2}, v{T}
    v_cmp_gt_u32 vcc, 3, v{T+2}
    s_and_b64 s[{S_VM}:{S_VM+1}], s[{S_VM}:{S_VM+1}], vcc
    v_cmp_gt_u32 vcc, 256, v{V_TID}
    s_and_b64 vcc, vcc, s[{S_VM}:{S_VM+1}]
    s_add_u32 s{S_OVJ}, s{S_OVJ}, 64
    v_add_u32 v{T}, s{S_T1}, v{T}
    v_lshlrev_b32 v{T+1}, 4, v{T}
    v_lshl_add_u32 v{T+3}, v{T+2}, 2, v{T+1}
    v_add_u32 v{T+1}, v{T+1}, v{T+2}             ; L offset - 12
    s_mul_i32 s{S_T1}, s{S_OVCH}, {NPC*16}
    s_add_u32 s{S_T1}, s{S_T1}, {DPG}
    s_and_saveexec_b64 s[{S_EX}:{S_EX+1}], vcc
    s_cbranch_execz K_SLOW_S1
    buffer_load_dword v{SW}, v{T+3}, s[{SWS}:{SWS+3}], s{S_T1} offen sc1
    buffer_load_ubyte v{LB}, v{T+1}, s[{SWS}:{SWS+3}], s{S_T1} offen offset:12 sc1
    """)
    a.label("K_SLOW_S1")
    a(f"""
    s_mov_b64 exec, s[{S_EX}:{S_EX+1}]
    s_waitcnt vmcnt(0)
    s_branch K_SLOW_BIN
    """)
    a.label("K_SLOW_RAW")
    a(f"""
    s_cmp_ge_u32 s{S_OVCH}, {E//256}
    s_cbranch_scc1 K_EPI_SLOW
    s_lshl_b32 s{S_T0}, s{S_OVCH}, 10
    s_add_u32 s{S_OVCH}, s{S_OVCH}, 1
    v_lshlrev_b32 v{T}, 2, v{V_TID}
    v_cmp_gt_u32 vcc, 256, v{V_TID}
    s_and_saveexec_b64 s[{S_EX}:{S_EX+1}], vcc
    s_cbranch_execz K_SLOW_O2
    """)
    srd(a, ST, P_DST, E * 4)
    srd(a, ST2, P_SRC, E * 4)
    a(f"""
    buffer_load_dword v{T+2}, v{T}, s[{ST}:{ST+3}], s{S_T0} offen
    buffer_load_dword v{SW}, v{T}, s[{ST2}:{ST2+3}], s{S_T0} offen
    """)
    srd(a, ST, P_DIS, N * 2)
    a(f"""
    s_waitcnt vmcnt(0)
    v_lshlrev_b32 v{T+3}, 1, v{SW}
    buffer_load_ushort v{T+3}, v{T+3}, s[{ST}:{ST+3}], 0 offen
    s_waitcnt vmcnt(0)
    v_lshl_or_b32 v{SW}, v{T+3}, 16, v{SW}
    """)
    tile_from_dst(a, T + 2, T, T + 1)
    a(f"""
    v_and_b32 v{T+4}, 15, v{T}
    v_lshl_or_b32 v{T+1}, v{T+4}, 4, v{T+1}
    v_lshrrev_b32 v{T}, 4, v{T}
    v_cmp_eq_u32 vcc, s{S_BK}, v{T}
    v_mov_b32 v{T}, 0xff
    s_nop 0
    v_cndmask_b32 v{LB}, v{T}, v{T+1}, vcc
    """)
    a.label("K_SLOW_O2")
    a(f"s_mov_b64 exec, s[{S_EX}:{S_EX+1}]")
    a.label("K_SLOW_BIN")
    a("s_waitcnt lgkmcnt(0)\ns_barrier")
    a(f"""
    v_bfe_u32 v{V_POS}, v{LB}, 0, 4
    v_bfe_u32 v{V_RK}, v{LB}, 4, 4
    v_cmp_ne_u32 s[{S_MSK}:{S_MSK+1}], 15, v{V_POS}
    v_lshl_add_u32 v{V_EN}, v{V_RK}, 2, s{S_CCNT}
    v_mov_b32 v{T}, 1
    s_mov_b64 exec, s[{S_MSK}:{S_MSK+1}]
    ds_add_rtn_u32 v{V_EN}, v{V_EN}, v{T}
    v_lshlrev_b32 v{V_POS}, v{V_POS}, 1
    s_waitcnt lgkmcnt(0)
    v_mad_u32_u24 v{V_RK}, v{V_RK}, s{S_CTC}, v{V_EN}
    v_lshl_add_u32 v{V_EN}, v{V_RK}, 2, s{S_CEL}
    v_lshl_add_u32 v{V_RK}, v{V_RK}, 1, s{S_COH}
    ds_write_b32 v{V_EN}, v{SW}
    ds_write_b16 v{V_RK}, v{V_POS}
    s_mov_b64 exec, -1
    s_waitcnt lgkmcnt(0)
    s_barrier
    """)
    count_read(a)
    a(f"s_mov_b32 s{S_MODE}, 1")
    entries_read(a, 0, 0)
    a("s_waitcnt lgkmcnt(0)")
    voff(a, 2)
    sbuild(a, 0)
    entries_read(a, 128, 64)
    a("s_waitcnt lgkmcnt(0)")
    voff(a, 0)
    sbuild(a, 1)
    cond_dma(a, 2, 0, 1, 0)
    cond_dma_l0h1(a, 2, 2)
    cond_dma(a, 0, 0, 0, 1)
    a("s_branch K_LOCAL")

STFLAG = ""
def epi_addr(a):
    L, T = V_LANE, V_T
    X = V_Q
    a(f"""
    v_and_b32 v{T}, 15, v{L}
    v_lshrrev_b32 v{T+1}, 5, v{L}
    v_and_b32 v{T+2}, 7, v{L}
    v_xor_b32 v{T+1}, v{T+1}, v{T+2}
    v_lshlrev_b32 v{T+1}, 4, v{T+1}
    v_lshl_add_u32 v{T}, v{T}, 7, v{T+1}
    v_bfe_u32 v{T+1}, v{L}, 4, 1
    v_lshl_add_u32 v{T}, v{T+1}, 3, v{T}
    v_add_u32 v{T}, s{S_RING}, v{T}
    v_xor_b32 v{T+1}, 32, v{T}
    v_xor_b32 v{T+2}, 64, v{T}
    v_xor_b32 v{T+3}, 96, v{T}
    v_lshl_add_u32 v{T+4}, v{L}, 4, s{S_RING}
    v_lshrrev_b32 v{X}, 3, v{L}
    v_and_b32 v{X+1}, 7, v{L}
    v_xor_b32 v{X+1}, v{X+1}, v{X}
    v_cmp_gt_u32 s[{S_MA}:{S_MA+1}], s{S_NVAL}, v{X}
    v_add_u32 v{X+2}, 8, v{X}
    v_cmp_gt_u32 s[{S_MA+2}:{S_MA+3}], s{S_NVAL}, v{X+2}
    v_add_u32 v{X}, s{S_NODE0}, v{X}
    v_lshlrev_b32 v{X}, 7, v{X}
    v_lshl_add_u32 v{T+5}, v{X+1}, 4, v{X}
    """)

def attn_out(a):
    BA = V_Q
    for half in range(2):
        for tt in range(2):
            for sx in range(2):
                a(f"ds_read_b128 {vr(V_P2+8*tt+4*sx,4)}, v{V_WA} offset:{16384+(2*(2*half+tt)+sx)*1024}")
        if half == 0:
            for sx in range(2):
                for h in range(2):
                    acc = V_ACA + 4 * (2 * sx + h)
                    a(f"v_cvt_pk_bf16_f32 v{BA+4*sx+2*h}, v{acc}, v{acc+1}")
                    a(f"v_cvt_pk_bf16_f32 v{BA+4*sx+2*h+1}, v{acc+2}, v{acc+3}")
        for tt in range(2):
            t = 2 * half + tt
            a(f"s_waitcnt lgkmcnt({2 if tt == 0 else 0})")
            a(f"v_mfma_f32_16x16x32_bf16 {vr(V_ACA+4*t,4)}, {vr(V_P2+8*tt,4)}, {vr(BA,4)}, 0")
            a(f"v_mfma_f32_16x16x32_bf16 {vr(V_ACA+4*t,4)}, {vr(V_P2+8*tt+4,4)}, {vr(BA+4,4)}, {vr(V_ACA+4*t,4)}")

def epilogue(a):
    L, T = V_LANE, V_T
    BL, OUTA = V_S, V_ACA
    for t in range(4):
        for sx in range(2):
            r = (V_P2 + 8 * t + 4 * sx) if t < 2 else (V_EN if sx == 0 else V_EN + 4) if t == 2 else (V_Q + 4 * sx)
            a(f"ds_read_b128 {vr(r,4)}, v{V_WA} offset:{8192+(2*t+sx)*1024}")
    a(f"v_lshlrev_b32 v{V_DIS}, 16, v{V_DIS}")
    a(f"""
    v_mov_b32 v{V_A+4}, {OOB}
    v_add_u32 v{V_A+3}, 1024, v{T+5}
    v_cndmask_b32 v{V_A+2}, v{V_A+4}, v{T+5}, s[{S_MA}:{S_MA+1}]
    v_cndmask_b32 v{V_A+3}, v{V_A+4}, v{V_A+3}, s[{S_MA+2}:{S_MA+3}]
    s_nop 2
    """)
    for i in range(16):
        a(f"v_mul_f32 v{V_ACL+i}, v{V_DIS}, v{V_ACL+i}")
    for s in range(2):
        for h in range(2):
            acc = V_ACL + 4 * (2 * s + h)
            a(f"v_cvt_pk_bf16_f32 v{BL+4*s+2*h}, v{acc}, v{acc+1}")
            a(f"v_cvt_pk_bf16_f32 v{BL+4*s+2*h+1}, v{acc+2}, v{acc+3}")
    a("s_waitcnt lgkmcnt(0)")
    for sx in range(2):
        for t in range(4):
            r = (V_P2 + 8 * t + 4 * sx) if t < 2 else (V_EN if sx == 0 else V_EN + 4) if t == 2 else (V_Q + 4 * sx)
            a(f"v_mfma_f32_16x16x32_bf16 {vr(OUTA+4*t,4)}, {vr(r,4)}, {vr(BL+4*sx,4)}, {vr(OUTA+4*t,4)}")
    a("s_nop 4")
    for t in range(4):
        acc = OUTA + 4 * t
        a(f"v_cvt_pk_bf16_f32 v{V_ACL+2*t}, v{acc}, v{acc+1}")
        a(f"v_cvt_pk_bf16_f32 v{V_ACL+2*t+1}, v{acc+2}, v{acc+3}")
        a(f"ds_write_b64 v{T+t}, {vr(V_ACL+2*t,2)}")
    a(f"""
    s_waitcnt lgkmcnt(0)
    ds_read_b128 {vr(V_ACA,4)}, v{T+4}
    ds_read_b128 {vr(V_ACA+4,4)}, v{T+4} offset:1024
    s_waitcnt lgkmcnt(1)
    buffer_store_dwordx4 {vr(V_ACA,4)}, v{V_A+2}, s[{SO}:{SO+3}], 0 offen{STFLAG}
    s_waitcnt lgkmcnt(0)
    buffer_store_dwordx4 {vr(V_ACA+4,4)}, v{V_A+3}, s[{SO}:{SO+3}], 0 offen{STFLAG}
    """)


KNAME = "standalone__hybrid_graph_tf_exphormer__graph_kernel"
K1FLAG = " sc1"
LDF = ""
RLF = " sc1"
POLL_MAX = 40000

def emit(a, opts):
    name = KNAME
    a.lines += [f".globl {name}", ".p2align 8", f".type {name},@function"]
    a.label(name)
    L, T = V_LANE, V_T
    a(f"""
    s_cmp_ge_u32 s2, {NB}
    s_cbranch_scc1 K_END
    s_load_dwordx4 s[{P_SRC}:{P_SRC+3}], s[0:1], 8
    s_load_dwordx2 s[{P_WS}:{P_WS+1}], s[0:1], 96
    s_load_dwordx2 s[{P_ES}:{P_ES+1}], s[0:1], 24
    s_load_dwordx2 s[{P_DIS}:{P_DIS+1}], s[0:1], 40
    s_load_dwordx4 s[{P_WL}:{P_WL+3}], s[0:1], 48
    s_load_dwordx4 s[{P_WK}:{P_WK+3}], s[0:1], 64
    s_load_dwordx2 s[{P_X}:{P_X+1}], s[0:1], 0
    s_load_dwordx2 s[{P_OUT}:{P_OUT+1}], s[0:1], 80
    s_load_dwordx2 s[{P_DBG}:{P_DBG+1}], s[0:1], 88
    """)
    if opts.get("ts"):
        a(f"s_memrealtime s[{S_TS}:{S_TS+1}]")
    a(f"""
    v_lshrrev_b32 v1, 6, v0
    v_mov_b32 v{V_TID}, v0
    v_readfirstlane_b32 s{S_W}, v1
    v_and_b32 v{L}, 63, v0
    v_lshlrev_b32 v3, 4, v0
    v_mov_b32 v1, {OOB}
    v_cmp_gt_u32 vcc, {CH//4}, v0
    s_mul_i32 s{S_T3}, s2, {CH*4}
    s_mul_i32 s{S_T0}, s{S_W}, 49
    v_cndmask_b32 v3, v1, v3, vcc
    s_and_b32 s{S_BK}, s2, 7
    s_lshl_b32 s{S_BK}, s{S_BK}, 5
    s_lshr_b32 s{S_T1}, s2, 3
    s_add_u32 s{S_BK}, s{S_BK}, s{S_T1}
    s_add_u32 s{S_T1}, s{S_T0}, 3
    s_lshr_b32 s{S_T1}, s{S_T1}, 2
    s_add_u32 s{S_T0}, s{S_T0}, 52
    s_lshr_b32 s{S_T0}, s{S_T0}, 2
    s_sub_u32 s{S_T0}, s{S_T0}, s{S_T1}
    s_mul_i32 s{S_NODE0}, s{S_BK}, {BK}
    s_add_u32 s{S_NODE0}, s{S_NODE0}, s{S_T1}
    s_sub_i32 s{S_T1}, {N}, s{S_NODE0}
    s_max_i32 s{S_T1}, s{S_T1}, 0
    s_min_i32 s{S_NVAL}, s{S_T0}, s{S_T1}
    s_mul_i32 s{S_RING}, s{S_W}, {RINGW}
    v_lshlrev_b32 v2, 2, v{L}
    s_lshl_b32 s{S_T2}, s{S_NODE0}, 4
    s_mov_b32 s{ST+2}, {E*4}
    s_mov_b32 s{ST+3}, 0x00020000
    s_mov_b32 s{ST2+2}, {E*4}
    s_mov_b32 s{ST2+3}, 0x00020000
    s_mov_b32 s{SWS+2}, {WS_REC}
    s_mov_b32 s{SWS+3}, 0x00020000
    s_waitcnt lgkmcnt(0)
    """)
    if opts.get("ts"):
        a(f"v_mov_b32 v{V_TSV}, 0\nv_writelane_b32 v{V_TSV}, s{S_TS}, 0\nv_writelane_b32 v{V_TSV}, s{S_TS+1}, 1")
    if opts.get("amp"):
        a(f"s_memrealtime s[{S_TS}:{S_TS+1}]\ns_waitcnt lgkmcnt(0)\nv_mov_b32 v{V_TSV}, 0\nv_writelane_b32 v{V_TSV}, s{S_TS}, 0")
    if opts.get("dbgts"):
        a(f"v_mov_b32 v{V_TSV}, 0")
        dstamp(a, 1, opts, neg=True)
        dstamp(a, 2, opts)
    a(f"""
    s_mov_b32 s{SWS}, s{P_WS}
    s_and_b32 s{SWS+1}, s{P_WS+1}, 0xffff
    s_mov_b32 s{ST}, s{P_DST}
    s_and_b32 s{ST+1}, s{P_DST+1}, 0xffff
    s_mov_b32 s{ST2}, s{P_SRC}
    s_and_b32 s{ST2+1}, s{P_SRC+1}, 0xffff
    s_cmp_lg_u32 s{S_W}, 0
    s_cbranch_scc1 K_NOCLR
    s_lshl_b32 s{S_T0}, s2, 7
    s_add_u32 s{S_T0}, s{S_T0}, {BAR}
    v_mov_b32 v12, 0
    s_mov_b64 exec, 1
    buffer_store_dword v12, v12, s[{SWS}:{SWS+3}], s{S_T0} offen sc1
    s_mov_b64 exec, -1
    """)
    a.label("K_NOCLR")
    a(f"""
    s_cmp_ge_u32 s{S_W}, 13
    s_cbranch_scc1 K_NOEDGELD
    buffer_load_dwordx4 v[4:7], v3, s[{ST}:{ST+3}], s{S_T3} offen{LDF}         ; dst
    buffer_load_dwordx4 v[8:11], v3, s[{ST2}:{ST2+3}], s{S_T3} offen{LDF}      ; src
    """)
    a.label("K_NOEDGELD")
    srd(a, ST, P_ES, 200000 * 4)
    a(f"buffer_load_dword v{V_ES}, v2, s[{ST}:{ST+3}], s{S_T2} offen{LDF}          ; esrc")
    a(f"""
    v_mov_b32 v14, -1
    v_lshlrev_b32 v13, 4, v{V_TID}
    v_add_u32 v13, {IMG+12}, v13
    ds_write_b32 v13, v14
    v_mov_b32 v18, 0
    v_lshlrev_b32 v19, 2, v{V_TID}
    v_add_u32 v19, {CN1}, v19
    s_cmp_ge_u32 s{S_W}, 4
    s_cbranch_scc1 K_INIT2
    ds_write_b32 v13, v14 offset:16384            ; pieces 1024..1279
    ds_write_b32 v19, v18
    s_cmp_lg_u32 s{S_W}, 0
    s_cbranch_scc1 K_INIT2
    v_mov_b32 v19, {POF+1028}
    ds_write_b32 v19, v18
    """)
    a.label("K_INIT2")
    a(f"""
    v_lshlrev_b32 v13, 4, v{V_TID}
    v_add_u32 v13, s{S_T3}, v13
    v_cmp_gt_u32 vcc, {E*4}, v13
    s_mov_b64 s[{A_VAL}:{A_VAL+1}], vcc
    v_cmp_gt_u32 vcc, {CH//4}, v{V_TID}
    s_and_b64 s[{A_VAL}:{A_VAL+1}], s[{A_VAL}:{A_VAL+1}], vcc
    s_waitcnt lgkmcnt(0)
    s_barrier
    """)
    stamp(a, 1, opts)
    a(f"s_cmp_lt_u32 s{S_W}, 13\ns_cbranch_scc1 K_DMADONE\ns_setprio 3")
    a(f"s_sub_u32 s{S_OVJ}, s{S_W}, 13\ns_mov_b32 s{S_T0}, s{S_OVJ}")
    srd(a, ST, P_DIS, N * 2)
    a(f"""
    s_lshr_b32 s{S_T1}, s2, 3
    s_mul_i32 s{S_T1}, s{S_T1}, 25
    s_lshr_b32 s{S_T1}, s{S_T1}, 5                ; rotation
    s_cmp_eq_u32 s{S_T0}, 2
    s_cselect_b32 s{S_T3}, 9, 8                   ; count
    s_mul_i32 s{S_T0}, s{S_T0}, 8
    s_add_u32 s{S_T1}, s{S_T1}, s{S_T0}
    v_lshlrev_b32 v12, 4, v{L}
    """)
    a.label("K_DISLOOP")
    a(f"""
    s_cmp_ge_u32 s{S_T1}, 25
    s_cselect_b32 s{S_T2}, 25, 0
    s_sub_u32 s{S_T1}, s{S_T1}, s{S_T2}
    s_lshl_b32 s{S_T2}, s{S_T1}, 12
    s_add_u32 m0, s{S_T2}, {DIS}
    s_cmp_eq_u32 s{S_T1}, 24
    s_addc_u32 s{S_T1}, s{S_T1}, 0
    buffer_load_dwordx4 v12, s[{ST}:{ST+3}], s{S_T2} offen lds
    buffer_load_dwordx4 v12, s[{ST}:{ST+3}], s{S_T2} offen offset:1024 lds
    s_cmp_eq_u32 s{S_T2}, {24*4096}
    s_cbranch_scc1 K_DISHALF
    buffer_load_dwordx4 v12, s[{ST}:{ST+3}], s{S_T2} offen offset:2048 lds
    buffer_load_dwordx4 v12, s[{ST}:{ST+3}], s{S_T2} offen offset:3072 lds
    s_add_u32 s{S_T1}, s{S_T1}, 1
    """)
    a.label("K_DISHALF")
    a(f"""
    s_sub_u32 s{S_T3}, s{S_T3}, 1
    s_cmp_lg_u32 s{S_T3}, 0
    s_cbranch_scc1 K_DISLOOP
    """)
    srd(a, ST, P_WQ, 8192)
    srd(a, ST2, P_WK, 8192)
    a(f"""
    s_mov_b32 s{S_T0}, s{S_OVJ}                   ; j
    v_bfe_u32 v12, v{L}, 4, 1
    v_and_b32 v13, 7, v{L}
    v_xor_b32 v12, v12, v13                       ; (l&7) ^ ((l>>4)&1)
    v_lshrrev_b32 v13, 3, v{L}
    v_lshlrev_b32 v13, 7, v13
    v_xor_b32 v14, 0, v12
    v_lshl_add_u32 v14, v14, 4, v13
    v_xor_b32 v15, 2, v12
    v_lshl_add_u32 v15, v15, 4, v13
    v_xor_b32 v16, 4, v12
    v_lshl_add_u32 v16, v16, 4, v13
    v_xor_b32 v17, 6, v12
    v_lshl_add_u32 v17, v17, 4, v13
    s_cmp_eq_u32 s{S_T0}, 2
    s_cbranch_scc1 K_WLV
    s_cmp_eq_u32 s{S_T0}, 0
    s_cselect_b32 s{ST}, s{ST}, s{ST2}
    s_cselect_b32 s{ST+1}, s{ST+1}, s{ST2+1}
    s_lshl_b32 s{S_T1}, s{S_T0}, 13
    s_add_u32 m0, s{S_T1}, {WQK}
    s_mov_b32 s{S_T2}, 0
    buffer_load_dwordx4 v14, s[{ST}:{ST+3}], s{S_T2} offen lds
    buffer_load_dwordx4 v15, s[{ST}:{ST+3}], s{S_T2} offen offset:1024 lds
    buffer_load_dwordx4 v16, s[{ST}:{ST+3}], s{S_T2} offen offset:2048 lds
    buffer_load_dwordx4 v17, s[{ST}:{ST+3}], s{S_T2} offen offset:3072 lds
    s_add_u32 m0, s{S_T1}, {WQK+4096}
    s_mov_b32 s{S_T2}, 4096
    buffer_load_dwordx4 v14, s[{ST}:{ST+3}], s{S_T2} offen lds
    buffer_load_dwordx4 v15, s[{ST}:{ST+3}], s{S_T2} offen offset:1024 lds
    buffer_load_dwordx4 v16, s[{ST}:{ST+3}], s{S_T2} offen offset:2048 lds
    buffer_load_dwordx4 v17, s[{ST}:{ST+3}], s{S_T2} offen offset:3072 lds
    """)
    a("s_branch K_WQ2")
    a.label("K_WLV")
    a(f"""
    v_bfe_u32 v12, v{L}, 4, 2
    v_lshlrev_b32 v12, 1, v12
    v_and_b32 v14, 7, v{L}
    v_xor_b32 v12, v12, v14
    v_lshl_add_u32 v14, v12, 4, v13
    """)
    for mi, P in enumerate((P_WL, P_WV)):
        a(f"s_mov_b32 s{ST}, s{P}\ns_and_b32 s{ST+1}, s{P+1}, 0xffff")
        for hf in range(2):
            a(f"s_mov_b32 m0, {WLVA + mi*8192 + hf*4096}\ns_mov_b32 s{S_T2}, {hf*4096}")
            for k in range(4):
                a(f"buffer_load_dwordx4 v14, s[{ST}:{ST+3}], s{S_T2} offen offset:{k*1024} lds")
    a.label("K_WQ2")
    a.label("K_DMADONE")
    stamp(a, 2, opts, 1)
    srd(a, SX, P_X, N * 128)
    srd(a, SO, P_OUT, N * 128)
    a(f"""
    s_mov_b32 s{S_PERM}, 0x07060302
    s_mov_b32 s{S_15}, 0x000f000f
    s_mov_b32 s{S_128}, 128
    v_bfe_u32 v{T}, v{L}, 4, 1
    v_lshlrev_b32 v{T}, 1, v{T}
    v_and_b32 v{T+1}, 7, v{L}
    v_xor_b32 v{T}, v{T}, v{T+1}
    v_lshlrev_b32 v{V_CH}, 4, v{T}
    v_xor_b32 v{V_CH+1}, 64, v{V_CH}
    v_and_b32 v{T}, 8, v{L}
    v_cmp_ne_u32 s[{S_U}:{S_U+1}], 0, v{T}
    v_and_b32 v{T}, 15, v{L}
    v_sub_u32 v{T}, 15, v{T}
    v_lshl_or_b32 v{V_SH}, v{T}, 16, v{T}
    v_bfe_u32 v{T}, v{L}, 3, 1
    v_lshrrev_b32 v{T+1}, 4, v{L}
    v_bfe_u32 v{T+2}, v{L}, 2, 1
    v_lshlrev_b32 v{T+3}, 3, v{T}
    v_lshl_add_u32 v{T+3}, v{T+1}, 1, v{T+3}
    v_add_u32 v{T+3}, v{T+3}, v{T+2}
    v_lshlrev_b32 v{T+3}, 7, v{T+3}
    v_and_b32 v{T+2}, 1, v{T+1}
    v_lshl_add_u32 v{T+2}, v{T}, 1, v{T+2}
    v_lshl_add_u32 v{T+3}, v{T+2}, 5, v{T+3}
    v_and_b32 v{T+2}, 3, v{L}
    v_lshl_add_u32 v{T+3}, v{T+2}, 3, v{T+3}
    v_add_u32 v{V_TR}, s{S_RING}, v{T+3}
    v_xor_b32 v{V_TR+1}, 32, v{V_TR}
    v_xor_b32 v{V_TR+2}, 64, v{V_TR}
    v_xor_b32 v{V_TR+3}, 96, v{V_TR}
    v_lshlrev_b32 v{V_WA}, 4, v{L}
    v_add_u32 v{V_WA}, {WM}, v{V_WA}
    v_mov_b32 v36, 0
    v_mov_b32 v37, 0
    v_mov_b32 v38, 0
    v_mov_b32 v39, 0
    v_mov_b32 v60, 0
    v_mov_b32 v61, 0
    v_mov_b32 v62, 0
    v_mov_b32 v63, 0
    v_mov_b32 v64, 0
    v_mov_b32 v65, 0
    v_mov_b32 v66, 0
    v_mov_b32 v67, 0
    v_and_b32 v{T}, 1, v{L}
    v_bfe_u32 v{T+1}, v{L}, 2, 2
    v_bfe_u32 v{T+2}, v{L}, 1, 1
    v_lshlrev_b32 v{T+3}, 3, v{T}
    v_lshl_add_u32 v{T+3}, v{T+1}, 1, v{T+3}
    v_add_u32 v{T+3}, v{T+3}, v{T+2}
    v_and_b32 v{T+1}, 1, v{T+1}
    v_lshl_add_u32 v{T}, v{T}, 1, v{T+1}
    v_lshlrev_b32 v{T}, 1, v{T}
    v_lshrrev_b32 v{T+1}, 4, v{L}
    v_xor_b32 v{T}, v{T}, v{T+1}
    v_lshlrev_b32 v{T}, 4, v{T}
    v_lshl_add_u32 v{T}, v{T+3}, 7, v{T}
    v_add_u32 v{V_P2A}, s{S_RING}, v{T}
    v_xor_b32 v{V_P2B}, 64, v{V_P2A}
    v_lshrrev_b32 v{T}, 4, v{L}
    v_and_b32 v{T+1}, 3, v{L}
    v_cmp_eq_u32 s[{S_VM}:{S_VM+1}], v{T}, v{T+1}
    v_and_b32 v{T}, 4, v{L}
    v_cmp_ne_u32 s[{S_B2}:{S_B2+1}], 0, v{T}
    v_and_b32 v{T}, 8, v{L}
    v_cmp_ne_u32 vcc, 0, v{T}
    s_andn2_b64 s[{S_MA}:{S_MA+1}], s[{S_VM}:{S_VM+1}], vcc
    s_and_b64 s[{S_MA+4}:{S_MA+5}], s[{S_VM}:{S_VM+1}], vcc
    s_and_b64 s[{S_MA+2}:{S_MA+3}], s[{S_MA}:{S_MA+1}], s[{S_B2}:{S_B2+1}]
    s_andn2_b64 s[{S_MA}:{S_MA+1}], s[{S_MA}:{S_MA+1}], s[{S_B2}:{S_B2+1}]
    s_and_b64 s[{S_MA+6}:{S_MA+7}], s[{S_MA+4}:{S_MA+5}], s[{S_B2}:{S_B2+1}]
    s_andn2_b64 s[{S_MA+4}:{S_MA+5}], s[{S_MA+4}:{S_MA+5}], s[{S_B2}:{S_B2+1}]
    """)
    list_addr_init(a)
    a(f"""
    v_bfe_u32 v40, v{L}, 2, 2
    v_and_b32 v41, 3, v{L}
    v_lshl_add_u32 v41, v40, 3, v41
    v_lshlrev_b32 v41, 7, v41
    v_bfe_u32 v42, v{L}, 1, 1
    v_lshl_add_u32 v40, v40, 1, v42
    v_lshrrev_b32 v42, 4, v{L}
    v_xor_b32 v40, v40, v42
    v_lshl_add_u32 v41, v40, 4, v41
    s_lshr_b32 s{S_T0}, s{S_W}, 2               ; t'
    s_bfe_u32 s{S_T1}, s{S_W}, 0x10001          ; s
    s_and_b32 s{S_T2}, s{S_W}, 1                ; hf
    s_lshl_b32 s{S_T1}, s{S_T1}, 5
    s_lshl_b32 s{S_T2}, s{S_T2}, 2
    s_add_u32 s{S_T1}, s{S_T1}, s{S_T2}
    s_lshl_b32 s{S_T1}, s{S_T1}, 7
    s_add_u32 s{S_T1}, s{S_T1}, {WQK}
    s_lshr_b32 s{S_T2}, s{S_T0}, 1
    s_lshl_b32 s{S_T2}, s{S_T2}, 5
    s_and_b32 s{S_T0}, s{S_T0}, 1
    s_lshl_b32 s{S_T0}, s{S_T0}, 2
    s_add_u32 s{S_T2}, s{S_T2}, s{S_T0}
    s_lshl_b32 s{S_T2}, s{S_T2}, 7
    s_add_u32 s{S_T2}, s{S_T2}, {WQK+8192}
    v_add_u32 v42, s{S_T1}, v41
    v_add_u32 v43, s{S_T2}, v41
    """)
    stamp(a, 3, opts, 1)
    a(f"""
    s_mov_b32 s{S_T0}, 1369569
    s_mov_b32 s{S_T1}, -49
    s_mov_b32 s{S_T2}, 43691
    s_mov_b32 s{S_CCNT}, {CN1}
    s_mov_b64 exec, s[{A_VAL}:{A_VAL+1}]
    s_cbranch_execz K_RANKED
    s_waitcnt vmcnt(2)
    """)
    stamp(a, 4, opts, 1)
    a(f"""
    s_cmp_lg_u32 s{S_W}, 0
    s_cbranch_scc1 K_NOINI
    s_mov_b64 exec, 1
    s_and_b32 s{S_T3}, s2, 3
    s_lshl_b32 s{S_T3}, s{S_T3}, 6
    v_mov_b32 v12, s{S_T3}
    v_mov_b32 v13, 1
    global_atomic_add v12, v13, s[{P_DBG}:{P_DBG+1}]
    s_mov_b64 exec, s[{A_VAL}:{A_VAL+1}]
    """)
    a.label("K_NOINI")
    for i in range(4):
        a(f"""
        v_lshlrev_b32 v{16+i}, 8, v{4+i}
        v_mul_hi_u32_u24 v{16+i}, s{S_T0}, v{16+i}
        v_lshrrev_b32 v{32+i}, 4, v{16+i}
        v_lshl_add_u32 v{28+i}, v{32+i}, 2, s{S_CCNT}
        """)
    a("v_mov_b32 v36, 1")
    for i in range(4):
        a(f"ds_add_rtn_u32 v{28+i}, v{28+i}, v36")
    for i in range(4):
        a(f"""
        v_lshlrev_b32 v{20+i}, 2, v{4+i}
        v_mad_i32_i24 v{20+i}, v{16+i}, s{S_T1}, v{20+i}
        v_lshrrev_b32 v{20+i}, 2, v{20+i}
        v_lshl_or_b32 v{20+i}, v{16+i}, 4, v{20+i}
        v_lshlrev_b32 v{32+i}, 2, v{32+i}
        v_add_u32 v{32+i}, {POF}, v{32+i}
        """)
    a("s_waitcnt lgkmcnt(0)")
    for i in range(4):
        a(f"""
        v_mul_u32_u24 v37, s{S_T2}, v{28+i}
        v_lshrrev_b32 v37, 17, v37
        v_mad_u32_u24 v{44+i}, v37, 13, v{28+i}
        v_add_lshl_u32 v{28+i}, v37, v{28+i}, 2
        """)
    a.label("K_RANKED")
    a(f"""
    s_mov_b64 exec, 1
    s_cmp_ge_u32 s{S_W}, 13
    s_cbranch_scc1 K_NODONE
    v_mov_b32 v12, {POF+1028}
    v_mov_b32 v13, 1
    ds_add_u32 v12, v13
    """)
    a.label("K_NODONE")
    a(f"""
    s_mov_b64 exec, -1
    s_cmp_lg_u32 s{S_W}, 0
    s_cbranch_scc1 K_NOSCAN
    s_setprio 3
    v_mov_b32 v12, {POF+1028}
    """)
    a.label("K_DONESPIN")
    a(f"""
    ds_read_b32 v13, v12
    s_waitcnt lgkmcnt(0)
    v_readfirstlane_b32 s{S_T0}, v13
    s_nop 3
    s_cmp_lt_u32 s{S_T0}, 13
    s_cbranch_scc1 K_DONESPIN
    v_lshlrev_b32 v12, 4, v{L}
    v_add_u32 v13, {CN1}, v12
    ds_read_b128 v[48:51], v13
    s_mov_b32 s{S_T2}, 43691
    s_waitcnt lgkmcnt(0)
    v_add_u32 v48, 2, v48
    v_add_u32 v49, 2, v49
    v_add_u32 v50, 2, v50
    v_add_u32 v51, 2, v51
    v_mul_u32_u24 v48, s{S_T2}, v48
    v_mul_u32_u24 v49, s{S_T2}, v49
    v_mul_u32_u24 v50, s{S_T2}, v50
    v_mul_u32_u24 v51, s{S_T2}, v51
    v_lshrrev_b32 v48, 17, v48
    v_lshrrev_b32 v49, 17, v49
    v_lshrrev_b32 v50, 17, v50
    v_lshrrev_b32 v51, 17, v51
    v_add_u32 v52, v48, v49
    v_add_u32 v53, v52, v50
    v_add_u32 v54, v53, v51
    v_mov_b32 v55, v54
    s_nop 1
    v_add_u32_dpp v55, v55, v55 row_shr:1 row_mask:0xf bank_mask:0xf
    s_nop 1
    v_add_u32_dpp v55, v55, v55 row_shr:2 row_mask:0xf bank_mask:0xf
    s_nop 1
    v_add_u32_dpp v55, v55, v55 row_shr:4 row_mask:0xf bank_mask:0xf
    s_nop 1
    v_add_u32_dpp v55, v55, v55 row_shr:8 row_mask:0xf bank_mask:0xf
    s_nop 1
    v_add_u32_dpp v55, v55, v55 row_bcast:15 row_mask:0xa bank_mask:0xf
    s_nop 1
    v_add_u32_dpp v55, v55, v55 row_bcast:31 row_mask:0xc bank_mask:0xf
    s_nop 1
    v_sub_u32 v56, v55, v54                       ; exclusive
    v_lshl_or_b32 v58, v48, 16, v56
    v_add_u32 v57, v56, v48
    v_lshl_or_b32 v59, v49, 16, v57
    v_add_u32 v57, v56, v52
    v_lshl_or_b32 v60, v50, 16, v57
    v_add_u32 v57, v56, v53
    v_lshl_or_b32 v61, v51, 16, v57
    v_add_u32 v13, {POF}, v12
    ds_write_b128 v13, v[58:61]
    v_mov_b32 v13, {POF+1024}
    s_mov_b32 exec_lo, 0
    s_mov_b32 exec_hi, 0x80000000
    ds_write_b32 v13, v55
    s_mov_b64 exec, -1
    """)
    a.label("K_NOSCAN")
    stamp(a, 2, opts)
    a(f"s_cmp_ge_u32 s{S_W}, 13\ns_cbranch_scc1 K_EA0\ns_waitcnt vmcnt(0)")
    ea_stage(a)
    a.label("K_EA0")
    stamp(a, 1, opts, 4)
    a(f"""
    s_cmp_eq_u32 s{S_W}, 15
    s_cbranch_scc1 K_BA1X
    s_cmp_ge_u32 s{S_W}, 13
    s_cbranch_scc1 K_BA1W
    s_waitcnt vmcnt(0) lgkmcnt(0)
    s_branch K_BA1
    """)
    TCH = 1 if opts.get("touch", 1) else 0
    a.label("K_BA1X")
    a(f"s_waitcnt vmcnt(16) lgkmcnt(0)\ns_branch K_BA1")
    a.label("K_BA1W")
    a(f"s_waitcnt vmcnt(8) lgkmcnt(0)")
    a.label("K_BA1")
    a("s_barrier\ns_setprio 0")
    stamp(a, 5, opts, 1)
    stamp(a, 2, opts, 4)
    if opts.get("touch", 1):
        a(f"""
        s_cmp_lt_u32 s{S_W}, 13
        s_cbranch_scc1 K_TOUCHED
        s_mul_i32 s{S_T1}, s{S_BK}, {BK*128}
        s_lshl_b32 s{S_T2}, s{S_OVJ}, 13
        s_add_u32 s{S_T1}, s{S_T1}, s{S_T2}
        s_mov_b32 s{ST}, s{P_X}
        s_and_b32 s{ST+1}, s{P_X+1}, 0xffff
        s_mov_b32 s{ST+2}, {N*128}
        v_lshlrev_b32 v12, 7, v{L}
        buffer_load_dword v80, v12, s[{ST}:{ST+3}], s{S_T1} offen
        s_cmp_lg_u32 s{S_OVJ}, 2
        s_cbranch_scc1 K_TOUCHED
        s_add_u32 s{S_T1}, s{S_T1}, 8192
        s_mov_b64 exec, 0xf
        buffer_load_dword v81, v12, s[{ST}:{ST+3}], s{S_T1} offen
        s_mov_b64 exec, -1
        """)
        a.label("K_TOUCHED")
    a(f"s_cmp_lt_u32 s{S_W}, 13\ns_cbranch_scc1 K_EA1")
    ea_stage(a)
    a.label("K_EA1")
    a(f"""
    s_cmp_lg_u32 s{S_W}, 0
    s_cbranch_scc1 K_NOINI2
    v_lshlrev_b32 v{V_INI-3}, 6, v{L}
    s_mov_b64 exec, 0xf
    global_load_dword v{V_INI}, v{V_INI-3}, s[{P_DBG}:{P_DBG+1}] sc1
    s_mov_b64 exec, -1
    """)
    a.label("K_NOINI2")
    a(f"""
    v_and_b32 v{V_DIS}, 15, v{L}
    v_add_u32 v{V_DIS}, s{S_NODE0}, v{V_DIS}
    v_lshlrev_b32 v{V_DIS}, 1, v{V_DIS}
    ds_read_u16 v{V_DIS}, v{V_DIS} offset:{DIS}
    s_mov_b64 exec, s[{A_VAL}:{A_VAL+1}]
    s_cbranch_execz K_NOEDGE
    """)
    for i in range(4):
        a(f"v_lshlrev_b32 v{24+i}, 1, v{8+i}\nds_read_b32 v{32+i}, v{32+i}\nds_read_u16 v{24+i}, v{24+i} offset:{DIS}")
    a("s_waitcnt lgkmcnt(0)")
    for i in range(4):
        a(f"""
        v_and_b32 v{32+i}, 0xffff, v{32+i}
        v_lshlrev_b32 v{32+i}, 4, v{32+i}
        v_lshl_or_b32 v{24+i}, v{24+i}, 16, v{8+i}
        v_add_u32 v{32+i}, {IMG}, v{32+i}
        v_add_u32 v{28+i}, v{28+i}, v{32+i}
        v_add_u32 v{44+i}, v{44+i}, v{32+i}
        ds_write_b32 v{28+i}, v{24+i}
        ds_write_b8 v{44+i}, v{20+i} offset:12
        """)
    a.label("K_NOEDGE")
    a("s_mov_b64 exec, -1")
    stamp(a, 3, opts, 4)
    a(f"""
    s_mov_b64 exec, -1
    s_cmp_lt_u32 s{S_W}, 13
    s_cbranch_scc1 K_BA2W
    s_cmp_eq_u32 s{S_W}, 15
    s_cbranch_scc1 K_BA2X
    s_waitcnt vmcnt({TCH})
    s_branch K_BA2W
    """)
    a.label("K_BA2X")
    a(f"s_waitcnt vmcnt({2*TCH})")
    a.label("K_BA2W")
    a(f"""
    s_waitcnt lgkmcnt(0)
    s_barrier
    """)
    stamp(a, 3, opts)
    stamp(a, 4, opts, 4)
    dstamp(a, 3, opts)
    if opts.get("amp") == 3:
        a(f"s_memrealtime s[{S_TS}:{S_TS+1}]\ns_waitcnt lgkmcnt(0)\nv_writelane_b32 v{V_TSV}, s{S_TS}, 1")
    a(f"""
    v_mov_b32 v29, {POF+1024}
    ds_read_b32 v30, v29
    v_lshlrev_b32 v6, 4, v{V_TID}
    v_add_u32 v7, {IMG}, v6
    ds_read_b128 v[8:11], v7
    ds_read_b128 v[12:15], v7 offset:16384
    v_xor_b32 v40, 64, v42
    v_xor_b32 v41, 64, v43
    ds_read_b128 v[44:47], v42
    ds_read_b128 v[48:51], v43
    ds_read_b128 v[52:55], v40
    ds_read_b128 v[56:59], v41
    s_mul_i32 s{S_T0}, s2, {NPC*16}
    v_mov_b32 v28, {OOB}
    v_add_u32 v19, 1024, v{V_TID}
    v_add_u32 v18, 16384, v6
    s_waitcnt lgkmcnt(6)
    v_cmp_gt_u32 vcc, v30, v{V_TID}
    v_cmp_gt_u32 s[{A_TMP}:{A_TMP+1}], v30, v19
    v_readfirstlane_b32 s{S_T1}, v30
    v_cndmask_b32 v6, v28, v6, vcc
    v_cndmask_b32 v18, v28, v18, s[{A_TMP}:{A_TMP+1}]
    s_waitcnt lgkmcnt(5)
    buffer_store_dwordx4 v[8:11], v6, s[{SWS}:{SWS+3}], s{S_T0} offen{K1FLAG}
    s_lshl_b32 s{S_T2}, s{S_W}, 6
    s_add_u32 s{S_T2}, s{S_T2}, 1024
    s_cmp_ge_u32 s{S_T2}, s{S_T1}
    s_cbranch_scc1 K_NOST2
    s_waitcnt lgkmcnt(4)
    buffer_store_dwordx4 v[12:15], v18, s[{SWS}:{SWS+3}], s{S_T0} offen{K1FLAG}
    """)
    a.label("K_NOST2")
    a(f"""
    s_cmp_lg_u32 s{S_W}, 15
    s_cbranch_scc1 K_NOOFT
    v_lshlrev_b32 v20, 4, v{L}
    v_add_u32 v21, {POF}, v20
    ds_read_b128 v[24:27], v21
    s_lshl_b32 s{S_T2}, s2, 10
    s_add_u32 s{S_T2}, s{S_T2}, {OFT}
    s_waitcnt lgkmcnt(0)
    buffer_store_dwordx4 v[24:27], v20, s[{SWS}:{SWS+3}], s{S_T2} offen{K1FLAG}
    """)
    a.label("K_NOOFT")
    a(f"""
    ; W_l / W_v operand quad of this wave: matrix w>>3, t = (w>>1)&3, s = w&1
    v_lshrrev_b32 v20, 4, v{L}
    v_bfe_u32 v21, v{L}, 2, 2
    v_lshl_add_u32 v22, v20, 2, v21
    v_lshlrev_b32 v22, 7, v22
    v_and_b32 v20, 1, v20
    v_lshrrev_b32 v21, 1, v21
    v_lshl_add_u32 v20, v20, 1, v21
    s_bfe_u32 s{S_T0}, s{S_W}, 0x20001
    v_xor_b32 v20, s{S_T0}, v20
    v_lshl_add_u32 v22, v20, 5, v22
    v_and_b32 v20, 3, v{L}
    v_lshl_add_u32 v22, v20, 3, v22
    s_lshr_b32 s{S_T0}, s{S_W}, 3
    s_lshl_b32 s{S_T0}, s{S_T0}, 13
    s_and_b32 s{S_T1}, s{S_W}, 1
    s_lshl_b32 s{S_T1}, s{S_T1}, 12
    s_add_u32 s{S_T0}, s{S_T0}, s{S_T1}
    s_add_u32 s{S_T0}, s{S_T0}, {WLVA}
    v_add_u32 v22, s{S_T0}, v22
    ds_read_b64_tr_b16 v[68:69], v22
    ds_read_b64_tr_b16 v[70:71], v22 offset:2048
    s_waitcnt lgkmcnt(0)
    v_mfma_f32_16x16x32_bf16 v[76:79], v[44:47], v[48:51], 0
    v_mfma_f32_16x16x32_bf16 v[76:79], v[52:55], v[56:59], v[76:79]
    """)
    stamp(a, 5, opts, 4)
    a("""
    s_barrier
    """)
    stamp(a, 6, opts, 4)
    stamp(a, 4, opts)
    stamp(a, 6, opts, 2)
    if opts.get("drainx"):
        a("s_waitcnt vmcnt(0)")
        stamp(a, 11, opts)
    a(f"""
    s_lshl_b32 s{S_T0}, s{S_W}, 10
    v_add_u32 v{T}, s{S_T0}, v{V_WA}
    ds_write_b128 v{T}, v[68:71] offset:8192
    s_lshr_b32 s{S_T0}, s{S_W}, 1
    s_lshl_b32 s{S_T0}, s{S_T0}, 10
    s_and_b32 s{S_T1}, s{S_W}, 1
    s_lshl_b32 s{S_T1}, s{S_T1}, 3
    s_add_u32 s{S_T0}, s{S_T0}, s{S_T1}
    v_add_u32 v{T+1}, s{S_T0}, v{V_WA}
    v_mul_u32_u24 v{VSIG}, {NSH*128}, v{L}
    v_mov_b32 v{VSIG+1}, 1
    v_cvt_pk_bf16_f32 v{V_MT}, v76, v77
    v_cvt_pk_bf16_f32 v{V_MT+1}, v78, v79
    ds_write_b64 v{T+1}, {vr(V_MT,2)}
    """)
    prefill_lists(a)
    a(f"""
    s_mov_b32 s{S_CCNT}, {CNT}
    s_mov_b32 s{S_CEL}, {EL}
    s_mov_b32 s{S_COH}, {OH}
    s_mov_b32 s{S_CTC}, {TC}
    s_mov_b32 s{S_SBI}, 0                          ; 1: hand-off gave up
    s_and_b32 s{S_OVJ}, s2, {NSH-1}
    s_lshl_b32 s{S_OVJ}, s{S_OVJ}, 7
    s_add_u32 s{S_OVJ}, s{S_OVJ}, {BAR}
    s_cmp_lg_u32 s{S_W}, 0
    s_cbranch_scc1 K_INIOK
    s_mov_b32 s{S_T0}, 0
    v_lshlrev_b32 v{V_INI-3}, 6, v{L}
    s_waitcnt vmcnt(0)
    """)
    a.label("K_INICHK")
    a(f"""
    v_cmp_ne_u32 vcc, 64, v{V_INI}
    s_and_b64 vcc, vcc, 0xf
    s_cmp_eq_u64 vcc, 0
    s_cbranch_scc1 K_INIOK
    s_add_u32 s{S_T0}, s{S_T0}, 1
    s_cmp_lt_u32 s{S_T0}, {opts.get("pollmax", POLL_MAX)}
    s_cbranch_scc0 K_INIFAIL
    s_sleep 1
    s_mov_b64 exec, 0xf
    global_load_dword v{V_INI}, v{V_INI-3}, s[{P_DBG}:{P_DBG+1}] sc1
    s_mov_b64 exec, -1
    s_waitcnt vmcnt(0)
    s_branch K_INICHK
    """)
    a.label("K_INIFAIL")
    a(f"s_mov_b32 s{S_SBI}, 1")
    a.label("K_INIOK")
    stamp(a, 7, opts, 4)
    stamp(a, 4, opts, 2)
    a("s_waitcnt vmcnt(0) lgkmcnt(0)\ns_barrier")
    a(f"""
    s_cmp_lg_u32 s{S_W}, 0
    s_cbranch_scc1 K_NOSIG
    {"s_mov_b32 exec_hi, 0" if NREP == 32 else ("s_mov_b64 exec, 0xffff" if NREP == 16 else "s_mov_b64 exec, -1")}
    buffer_atomic_add v{VSIG+1}, v{VSIG}, s[{SWS}:{SWS+3}], s{S_OVJ} offen
    s_mov_b64 exec, -1
    """)
    a.label("K_NOSIG")
    stamp(a, 8, opts, 4)
    dstamp(a, 4, opts)
    stamp(a, 5, opts)
    stamp(a, 3, opts, 3)
    a(f"""
    s_add_u32 m0, s{S_RING}, {2*2048}
    s_nop 0
    buffer_load_dwordx4 v{VOWN}, s[{SX}:{SX+3}], 0 offen lds
    s_add_u32 m0, s{S_RING}, {2*2048+1024}
    s_nop 0
    buffer_load_dwordx4 v{VOWN+1}, s[{SX}:{SX+3}], 0 offen lds
    """)
    dma(a, 0, 0, 0)
    dma(a, 0, 1, 1)
    a(f"""
    v_lshrrev_b32 v{T}, 2, v{V_TID}
    v_lshlrev_b32 v{V_EN}, 10, v{T}
    s_mov_b32 s{S_T0}, {NPC*16}
    v_mul_u32_u24 v{V_EN+1}, s{S_T0}, v{T}
    v_and_b32 v{V_EN+2}, 3, v{V_TID}               ; p
    s_lshl_b32 s{S_T3}, s{S_BK}, 2
    s_add_u32 s{S_T3}, s{S_T3}, {OFT}
    s_mov_b32 s{S_MODE}, 0
    s_cmp_eq_u32 s{S_W}, 0
    s_cbranch_scc1 K_POLLER
    """)
    def xpart(which):
        if which & 1:
            a(f"""
            ds_read_b128 {vr(XB0,4)}, v{XBA} offset:4096
            ds_read_b128 {vr(XB1,4)}, v{XBA+1} offset:4096
            s_waitcnt lgkmcnt(0)
            """)
            p1(a)
            a("s_nop 2")
            p1_pack(a)
        if which & 2:
            attn_reads(a, 0, 1)
            a("s_waitcnt lgkmcnt(0)")
            attn_compute(a, 0, keep_d1=True)
    XM = opts.get("xmode", 1)
    PRE = {0: 0, 1: 1, 2: 3}[XM]
    if PRE:
        a("s_waitcnt vmcnt(4)" if PRE == 1 else "s_waitcnt vmcnt(0)")
        a.label("K_X")
        xpart(PRE)
        a(f"s_cmp_eq_u32 s{S_W}, 0\ns_cbranch_scc1 K_XDONE0")
    a("s_barrier")
    a(f"""
    buffer_load_dword v{PO}, v{V_EN}, s[{SWS}:{SWS+3}], s{S_T3} offen sc1
    s_branch K_XDONE0
    """)
    a.label("K_POLLER")
    a(f"""
    s_mov_b32 s{S_T0}, 0
    s_cmp_lg_u32 s{S_SBI}, 0
    s_cbranch_scc1 K_POLL_FAIL
    s_and_b32 s{S_T1}, s2, {NREP-1}
    s_mul_i32 s{S_T1}, s{S_T1}, {NSH*128}
    s_add_u32 s{S_T1}, s{S_T1}, {BAR}
    s_add_u32 s{S_EX}, s{P_WS}, s{S_T1}
    s_addc_u32 s{S_EX+1}, s{P_WS+1}, 0
    s_setprio 3
    """)
    a.label("K_POLL")
    for i in range(NSH):
        a(f"s_load_dword s{S_MSK+i}, s[{S_EX}:{S_EX+1}], {i*128} glc")
    a(f"s_add_u32 s{S_T0}, s{S_T0}, 1\ns_waitcnt lgkmcnt(0)")
    if opts.get("ts") and opts.get("tss") == 3:
        lb = a.new("FP")
        a(f"s_cmp_lg_u32 s{S_T0}, 1\ns_cbranch_scc1 {lb}")
        stamp(a, 1, opts, 3)
        a.label(lb)
    a(f"s_mov_b32 s{S_T1}, 0")
    for i in range(NSH):
        a(f"s_xor_b32 s{S_MSK+i}, s{S_MSK+i}, {256//NSH}\ns_or_b32 s{S_T1}, s{S_T1}, s{S_MSK+i}")
    a(f"""
    s_cmp_eq_u32 s{S_T1}, 0
    s_cbranch_scc1 K_POLL_OK
    s_cmp_lt_u32 s{S_T0}, {opts.get("pollmax", POLL_MAX)}
    s_cbranch_scc1 K_POLL
    """)
    a.label("K_POLL_FAIL")
    a(f"""
    v_mov_b32 v{T}, {CNT+68}
    v_mov_b32 v{T+1}, 1
    ds_write_b32 v{T}, v{T+1}
    s_branch K_POLL_DONE
    """)
    a.label("K_POLL_OK")
    stamp(a, 2, opts, 3)
    if opts.get("ts") and opts.get("tss") == 3:
        a(f"v_writelane_b32 v{V_TSV}, s{S_T0}, 22\ns_mov_b32 s{S_T1}, 0\nv_writelane_b32 v{V_TSV}, s{S_T1}, 23")
    a(f"""
    v_mov_b32 v{T}, {CNT+68}
    v_mov_b32 v{T+1}, 0
    ds_write_b32 v{T}, v{T+1}
    """)
    a.label("K_POLL_DONE")
    a("s_waitcnt lgkmcnt(0)\ns_barrier")
    a(f"buffer_load_dword v{PO}, v{V_EN}, s[{SWS}:{SWS+3}], s{S_T3} offen sc1")
    if PRE:
        a("s_waitcnt vmcnt(1)\ns_branch K_X")
    a.label("K_XDONE0")
    a("s_setprio 0")
    stamp(a, 6, opts)
    stamp(a, 4, opts, 3)
    a(f"""
    v_mov_b32 v{T}, {CNT+68}
    ds_read_b32 v{T+1}, v{T}
    """)
    if not (PRE & 1):
        a("s_waitcnt vmcnt(1)")
        a(f"v_mov_b32 v{T+3}, v{T+1}") if False else None
    a(f"""
    s_waitcnt lgkmcnt(0)
    v_readfirstlane_b32 s{S_SBI}, v{T+1}          ; 1: hand-off gave up
    """)
    if not (PRE & 1):
        xpart(1)
    a(f"""
    v_mov_b32 v{T+2}, {OOB}
    s_waitcnt vmcnt(0)
    """)
    stamp(a, 5, opts, 3)
    a(f"""
    v_and_b32 v{T}, 0xffff, v{PO}
    v_lshrrev_b32 v{PO}, 16, v{PO}                ; pieces
    v_add_u32 v{T}, v{T}, v{V_EN+2}
    v_lshl_add_u32 v{PA}, v{T}, 4, v{V_EN+1}
    v_cmp_gt_u32 s[{S_EX}:{S_EX+1}], v{PO}, v{V_EN+2}
    v_add_u32 v{T+1}, 4, v{V_EN+2}
    v_cmp_gt_u32 s[{S_VM}:{S_VM+1}], v{PO}, v{T+1}
    s_cmp_lg_u32 s{S_SBI}, 0
    s_cselect_b64 s[{S_EX}:{S_EX+1}], 0, s[{S_EX}:{S_EX+1}]
    s_cselect_b64 s[{S_VM}:{S_VM+1}], 0, s[{S_VM}:{S_VM+1}]
    v_add_u32 v{T+1}, 64, v{PA}
    v_cndmask_b32 v{T}, v{T+2}, v{PA}, s[{S_EX}:{S_EX+1}]
    v_cndmask_b32 v{T+1}, v{T+2}, v{T+1}, s[{S_VM}:{S_VM+1}]
    buffer_load_dwordx4 {vr(V_SW,4)}, v{T}, s[{SWS}:{SWS+3}], 0 offen{RLF}
    buffer_load_dwordx4 {vr(V_SW+4,4)}, v{T+1}, s[{SWS}:{SWS+3}], 0 offen{RLF}
    """)
    if not (PRE & 2):
        xpart(2)
    a("s_waitcnt vmcnt(0)")
    stamp(a, 6, opts, 3)
    dma(a, 1, 0, 2)
    a(f"""
    s_cmp_lg_u32 s{S_SBI}, 0
    s_cbranch_scc1 K_NOBIN
    v_cndmask_b32 v{V_SW+3}, -1, v{V_SW+3}, s[{S_EX}:{S_EX+1}]
    v_cndmask_b32 v{V_SW+7}, -1, v{V_SW+7}, s[{S_VM}:{S_VM+1}]
    """)
    recs = [(0, V_SW, V_SW+3, 0), (1, V_SW+1, V_SW+3, 1), (2, V_SW+2, V_SW+3, 2),
            (3, V_SW+4, V_SW+7, 0), (4, V_SW+5, V_SW+7, 1), (5, V_SW+6, V_SW+7, 2)]
    bin_group(a, recs, False)
    a(f"""
    v_mov_b32 v{V_S+2}, v{V_EN+8}
    """) if False else None
    a.label("K_MORE")
    a(f"""
    v_cmp_lt_u32 vcc, 8, v{PO}
    s_cmp_eq_u64 vcc, 0
    s_cbranch_scc1 K_NOBIN
    v_subrev_u32 v{PO}, 8, v{PO}
    v_max_i32 v{PO}, 0, v{PO}
    v_add_u32 v{PA}, 128, v{PA}
    v_and_b32 v{T}, 3, v{V_TID}
    v_cmp_gt_u32 s[{S_EX}:{S_EX+1}], v{PO}, v{T}
    v_add_u32 v{T}, 4, v{T}
    v_cmp_gt_u32 s[{S_VM}:{S_VM+1}], v{PO}, v{T}
    v_mov_b32 v{T+2}, {OOB}
    v_add_u32 v{T+1}, 64, v{PA}
    v_cndmask_b32 v{T}, v{T+2}, v{PA}, s[{S_EX}:{S_EX+1}]
    v_cndmask_b32 v{T+1}, v{T+2}, v{T+1}, s[{S_VM}:{S_VM+1}]
    buffer_load_dwordx4 {vr(V_SW,4)}, v{T}, s[{SWS}:{SWS+3}], 0 offen{RLF}
    buffer_load_dwordx4 {vr(V_SW+4,4)}, v{T+1}, s[{SWS}:{SWS+3}], 0 offen{RLF}
    s_waitcnt vmcnt(0)
    v_cndmask_b32 v{V_SW+3}, -1, v{V_SW+3}, s[{S_EX}:{S_EX+1}]
    v_cndmask_b32 v{V_SW+7}, -1, v{V_SW+7}, s[{S_VM}:{S_VM+1}]
    """)
    bin_group(a, recs, True)
    a("s_branch K_MORE")
    a.label("K_NOBIN")
    la = a.new("SKA")
    a(f"s_cmp_le_u32 s{S_NVAL}, 12\ns_cbranch_scc1 {la}")
    dma(a, 1, 1, 0)
    a.label(la)
    for i in range(16):
        a(f"v_mov_b32 v{V_ACL+i}, 0")
    stamp(a, 7, opts, 3)
    a("s_waitcnt lgkmcnt(0)\ns_barrier")
    dstamp(a, 6, opts)
    if opts.get("amp") == 4:
        a(f"s_memrealtime s[{S_TS}:{S_TS+1}]\ns_waitcnt lgkmcnt(0)\nv_writelane_b32 v{V_TSV}, s{S_TS}, 1")
    stamp(a, 7, opts)
    stamp(a, 8, opts, 3)
    if PRIO: a("s_setprio 3")
    count_read(a)
    a(f"""
    s_cmp_lg_u32 s{S_SBI}, 0
    s_cselect_b32 s{S_NST}, 0, s{S_NST}
    s_cselect_b32 s{S_MODE}, 3, s{S_MODE}
    """)
    entries_read(a, 0, 0)
    a("s_waitcnt lgkmcnt(0)")
    voff(a, 2)
    cond_dma(a, 2, 0, 1, 0)
    sbuild(a, 0)
    entries_read(a, 128, 64)
    l0, l1 = a.new("WV"), a.new("WV")
    a(f"s_cmp_eq_u32 s{S_NST}, 0\ns_cbranch_scc1 {l0}\ns_waitcnt vmcnt(2)\ns_branch {l1}")
    a.label(l0); a("s_waitcnt vmcnt(0)"); a.label(l1)
    a("s_waitcnt lgkmcnt(0)")
    voff(a, 0)
    sbuild(a, 1)
    attn_reads(a, 2, 0)
    a("s_waitcnt lgkmcnt(0)")
    cond_dma_l0h1(a, 2, 2)
    cond_dma(a, 0, 0, 0, 1)
    attn_compute(a, 1)
    stamp(a, 8, opts)
    epi_addr(a)
    attn_out(a)
    a.label("K_LOCAL")
    local_steps(a)
    a.label("K_LOCAL_DONE")
    slow_path(a)
    a.label("K_EPI_SLOW")
    epi_addr(a)
    a.label("K_EPI")
    dstamp(a, 7, opts)
    stamp(a, 9, opts)
    epilogue(a)
    if opts.get("dbgts"):
        a("s_waitcnt vmcnt(0)")
        dstamp(a, 8, opts)
        a(f"v_writelane_b32 v{V_TSV}, s{S_MODE}, 9")
        dflush(a, opts, 9)
    if opts.get("ts"):
        a("s_waitcnt vmcnt(0)")
        stamp(a, 10, opts)
    if opts.get("amp"):
        k = opts["amp"]
        a("s_waitcnt vmcnt(0)")
        if k == 1:
            a(f"s_memrealtime s[{S_TS}:{S_TS+1}]\ns_waitcnt lgkmcnt(0)\nv_writelane_b32 v{V_TSV}, s{S_TS}, 1")
        a(f"""
        s_memrealtime s[{S_TS}:{S_TS+1}]
        v_readlane_b32 s{S_T0}, v{V_TSV}, 0
        v_readlane_b32 s{S_T1}, v{V_TSV}, 1
        s_waitcnt lgkmcnt(0)
        s_sub_u32 s{S_T1}, s{S_T1}, s{S_T0}
        s_mul_i32 s{S_T1}, s{S_T1}, {opts.get("ampk", 1)}
        s_add_u32 s{S_T1}, s{S_T1}, s{S_TS}
        """)
        a.label("K_AMPSP")
        a(f"""
        s_memrealtime s[{S_TS}:{S_TS+1}]
        s_waitcnt lgkmcnt(0)
        s_sub_u32 s{S_T2}, s{S_TS}, s{S_T1}
        s_cmp_lt_i32 s{S_T2}, 0
        s_cbranch_scc1 K_AMPSP
        """)
    stamps_flush(a, opts, 12)
    a.label("K_END")
    a("s_endpgm")
    return name


def kd(name, vgpr, sgpr):
    return f""".amdhsa_kernel {name}
  .amdhsa_next_free_vgpr {vgpr}
  .amdhsa_next_free_sgpr {sgpr}
  .amdhsa_accum_offset {vgpr}
  .amdhsa_group_segment_fixed_size 0
  .amdhsa_kernarg_size 104
  .amdhsa_user_sgpr_count 2
  .amdhsa_user_sgpr_kernarg_segment_ptr 1
  .amdhsa_system_sgpr_workgroup_id_x 1
  .amdhsa_float_denorm_mode_32 3
.end_amdhsa_kernel
"""

HEADER = """; Exphormer-style hybrid graph layer for N=50000, D=64, E=800000, expander degree 4 (one launch, one workgroup per CU).
;
;
; Phase A: workgroup c takes 3136 edges, sorts them by destination bucket (196 nodes) in LDS (rank atomics + scan),
; Hand-off: arrival counters in ws (cleared by this launch; the clears are announced on the zeroed debug counters).
"""

def generate(opts):
    global STFLAG, K1FLAG, LDF, RLF, PRIO, A0EARLY
    A0EARLY = opts.get('a0e', 1)
    PRIO = opts.get('prio', 2)
    F = {0: "", 1: " sc1", 2: " nt", 3: " sc0 sc1", 4: " sc1 nt", 5: " sc0 sc1 nt"}
    LDF = F[opts.get("ldf", 2)]
    K1FLAG = F[opts.get("k1f", 1)]
    RLF = F[opts.get("rlf", 1)]
    STFLAG = F[opts.get("stf", 1)]
    txt = HEADER + f"; @launch grid=({NB},1,1) block=(1024,1,1) lds={LDS}\n"
    body = A()
    n = emit(body, opts)
    txt += '.amdgcn_target "amdgcn-amd-amdhsa--gfx950"\n.text\n' + body.text()
    txt += '.section .rodata,"a"\n.p2align 6\n' + kd(n, 128, 102)
    return txt

if __name__ == "__main__":
    opts = {}
    out = "standalone__hybrid_graph_tf_exphormer__graph.s"
    for arg in sys.argv[1:]:
        if arg.startswith("-o"):
            out = arg[2:]
        elif "=" in arg:
            k, v = arg.split("="); opts[k] = int(v)
    open(out, "w").write(generate(opts))
    print("wrote", out)
```

```python
import sys

N = 50000
E = 800000
NB = 256
BK = 196
CH = 3136
TC = 288
OOB = 0x7f000000

NPC = 1280
DPG = 0
OFT = DPG + NB * NPC * 16
NREP, NSH = int(__import__('os').environ.get('NREP', 16)), int(__import__('os').environ.get('NSH', 16))
BAR = OFT + NB * 1024
WS_END = BAR + 256 * 128
TSG = WS_END
WS_REC = TSG + (1 << 20)

DIS = 0
IMG = 98 * 1024
CN1 = IMG + NPC * 16
POF = CN1 + 1024
WQK = POF + 1024 + 128
WLVA = WQK + 16384
EAA = WLVA + 16384
LDS_A = EAA + 4096
assert WLVA % 128 == 0
assert WQK % 128 == 0
RINGW = 6144
WM = 16 * RINGW
EA = WM + 24576
EL = EA + 4096
OH = EL + 16 * TC * 4
CNT = OH + 16 * TC * 2
LDS_C = CNT + 128
LDS = max(LDS_A, LDS_C)
assert LDS <= 163840, LDS


class A:
    def __init__(self):
        self.lines = []
        self.uid = 0
    def __call__(self, s):
        for ln in s.strip("\n").split("\n"):
            ln = ln.strip()
            if ln:
                self.lines.append("    " + ln)
    def label(self, name):
        self.lines.append(name + ":")
    def new(self, base):
        self.uid += 1
        return f"{base}_{self.uid}"
    def text(self):
        return "\n".join(self.lines) + "\n"

def vr(a, n=1):
    return f"v{a}" if n == 1 else f"v[{a}:{a+n-1}]"

S_W = 3
SX, SWS, SO, ST, ST2 = 4, 8, 12, 16, 20
P_SRC, P_DST, P_ES, P_DIS, P_WS, P_X, P_WL, P_WQ, P_WK, P_WV, P_OUT = 24, 26, 28, 30, 32, 34, 36, 38, 40, 42, 44
P_DBG = 98
S_NODE0, S_NVAL, S_PERM, S_15, S_128, S_RING, S_NST, S_REM = 46, 47, 48, 49, 50, 51, 52, 53
S_T0, S_T1, S_T2, S_T3 = 54, 55, 56, 57
S_MODE, S_CNT, S_BK, S_OVCH, S_SBI, S_OVJ = 58, 59, 60, 61, 62, 63
S_HL = 98
S_MA, S_B2, S_U, S_EX, S_VM = 64, 72, 74, 76, 78
S_CCNT, S_CEL, S_COH, S_CTC = 80, 81, 82, 83
S_MSK = 84
S_TS = 100
A_VAL = 84
A_WR = 86
A_OVF = 94
A_TMP = 96
A_EX = 76

V_ACL, V_ACA, V_A, V_S, V_VO, V_EN, V_Q, V_P2 = 0, 16, 32, 48, 60, 72, 84, 92
V_TR, V_CH, V_E, V_O, V_SH, V_DIS, V_LANE, V_TID, V_T = 108, 112, 114, 115, 116, 117, 118, 119, 120
V_P2A, V_P2B, V_WA, V_TSV = 124, 125, 126, 127
V_SW = 0
V_RK, V_POS = 32, 40
V_XB = 48
XB0, XB1 = 68, 76
PO, PA, VWK, VDK = 48, 49, 50, 51
V_MT = 72
V_INI = 83
V_POFF = 81
V_ES = 82

def stamp(a, i, opts, sset=0):
    if opts.get("ts") and (i == 0 or opts.get("tss", 0) == sset):
        a(f"""
        s_memrealtime s[{S_TS}:{S_TS+1}]
        s_waitcnt lgkmcnt(0)
        v_writelane_b32 v{V_TSV}, s{S_TS}, {2*i}
        v_writelane_b32 v{V_TSV}, s{S_TS+1}, {2*i+1}
        """)

def dstamp(a, i, opts, neg=False):
    if not opts.get("dbgts"):
        return
    lab = a.new("DS")
    a(f"""
    s_cmp_lg_u32 s{S_W}, 0
    s_cbranch_scc1 {lab}
    s_memrealtime s[{S_TS}:{S_TS+1}]
    s_waitcnt lgkmcnt(0)
    """)
    if neg:
        a(f"s_not_b32 s{S_TS}, s{S_TS}")
    a(f"""
    s_mov_b64 s[{S_TS+0}:{S_TS+1}], s[{S_TS}:{S_TS+1}]
    v_writelane_b32 v{V_TSV}, s{S_TS}, {i}
    """)
    a.label(lab)

def dflush(a, opts, n):
    if not opts.get("dbgts"):
        return
    lab = a.new("DF")
    a(f"""
    s_cmp_lg_u32 s{S_W}, 0
    s_cbranch_scc1 {lab}
    s_load_dwordx2 s[{S_T0}:{S_T0+1}], s[0:1], 88
    v_lshlrev_b32 v{V_T}, 2, v{V_LANE}
    s_waitcnt lgkmcnt(0)
    s_mov_b64 exec, {((1 << (n+1)) - 1) & ~1}
    global_atomic_umax v{V_T}, v{V_TSV}, s[{S_T0}:{S_T0+1}]
    s_waitcnt vmcnt(0)
    s_mov_b64 exec, -1
    """)
    a.label(lab)

def stamps_flush(a, opts, n):
    if not opts.get("ts"):
        return
    vt = V_T
    a(f"""
    s_lshl_b32 s{S_T0}, s2, 4
    s_add_u32 s{S_T0}, s{S_T0}, s{S_W}
    s_lshl_b32 s{S_T0}, s{S_T0}, 7
    s_add_u32 s{S_T0}, s{S_T0}, {TSG}
    v_lshlrev_b32 v{vt}, 2, v{V_LANE}
    s_mov_b64 exec, {(1 << (2*n)) - 1}
    s_nop 4
    buffer_store_dword v{V_TSV}, v{vt}, s[{SWS}:{SWS+3}], s{S_T0} offen
    s_waitcnt vmcnt(0)
    """)

def srd(a, dst, p, nrec):
    a(f"""
    s_mov_b32 s{dst}, s{p}
    s_and_b32 s{dst+1}, s{p+1}, 0xffff
    s_mov_b32 s{dst+2}, {nrec}
    s_mov_b32 s{dst+3}, 0x00020000
    """)

def entries_read(a, oe, oo):
    a(f"""
    ds_read_b128 {vr(V_EN,4)}, v{V_E} offset:{oe}
    ds_read_b128 {vr(V_EN+4,4)}, v{V_E} offset:{oe+64}
    ds_read_b64 {vr(V_EN+8,2)}, v{V_O} offset:{oo}
    ds_read_b64 {vr(V_EN+10,2)}, v{V_O} offset:{oo+32}
    """)

def voff(a, vset):
    vo = V_VO + 4 * vset
    for q in range(4):
        a(f"v_cndmask_b32 v{vo+q}, v{V_EN+2*q}, v{V_EN+2*q+1}, s[{S_U}:{S_U+1}]")
    for q in range(4):
        a(f"v_mad_u32_u16 v{vo+q}, v{vo+q}, s{S_128}, v{V_CH+(q&1)}")

def sbuild(a, sset):
    s = V_S + 4 * sset
    for p in range(4):
        a(f"v_pk_lshlrev_b16 v{V_EN+8+p}, v{V_SH}, v{V_EN+8+p}")
    for p in range(4):
        a(f"v_perm_b32 v{s+p}, v{V_EN+2*p+1}, v{V_EN+2*p}, s{S_PERM}")
    for p in range(4):
        a(f"v_pk_ashrrev_i16 v{V_EN+8+p}, s{S_15}, v{V_EN+8+p}")
    for p in range(4):
        a(f"v_and_b32 v{s+p}, v{s+p}, v{V_EN+8+p}")

def dma(a, vset, h, pair, fill=None):
    vo = V_VO + 4 * vset + 2 * h
    a(f"s_add_u32 m0, s{S_RING}, {pair*2048}")
    a(fill[0] if fill else "s_nop 0")
    a(f"buffer_load_dwordx4 v{vo}, s[{SX}:{SX+3}], 0 offen lds")
    a(f"s_add_u32 m0, s{S_RING}, {pair*2048+1024}")
    a(fill[1] if fill else "s_nop 0")
    a(f"buffer_load_dwordx4 v{vo+1}, s[{SX}:{SX+3}], 0 offen lds")

def tr(a, h, pair):
    for t in range(4):
        a(f"ds_read_b64_tr_b16 {vr(V_A+4*t+2*h,2)}, v{V_TR+t} offset:{pair*2048}")

def mfma_agg(a, acc, sreg, zero=False):
    for t in range(4):
        c = "0" if zero else vr(acc+4*t,4)
        a(f"v_mfma_f32_16x16x32_bf16 {vr(acc+4*t,4)}, {vr(V_A+4*t,4)}, {vr(sreg,4)}, {c}")

def cond_dma(a, vset, h, pair, step):
    lab = a.new("SKD")
    a(f"s_cmp_le_u32 s{S_NST}, {step}\ns_cbranch_scc1 {lab}")
    dma(a, vset, h, pair)
    a.label(lab)

def cond_dma_l0h1(a, vset, pair):
    lab, go = a.new("SKD"), a.new("SKG")
    a(f"""
    s_cmp_eq_u32 s{S_NST}, 0
    s_cbranch_scc1 {lab}
    s_cmp_ge_u32 s{S_NST}, 2
    s_cbranch_scc1 {go}
    s_cmp_eq_u32 s{S_HL}, 0
    s_cbranch_scc1 {lab}
    """)
    a.label(go)
    dma(a, vset, 1, pair)
    a.label(lab)

def prefill_lists(a):
    L, T = V_LANE, V_T
    a(f"""
    v_mov_b32 v{V_A}, 0xffff
    v_mov_b32 v{V_A+1}, 0xffff
    v_mov_b32 v{V_A+2}, 0xffff
    v_mov_b32 v{V_A+3}, 0xffff
    s_mul_i32 s{S_T0}, s{S_W}, {TC*4}
    s_add_u32 s{S_T0}, s{S_T0}, {EL}
    v_lshl_add_u32 v{T}, v{L}, 4, s{S_T0}
    s_lshl_b32 s{S_T1}, s{S_W}, 2
    s_add_u32 s{S_T1}, s{S_T1}, {CNT}
    v_mov_b32 v{T+1}, 0
    v_mov_b32 v{T+2}, s{S_T1}
    ds_write_b128 v{T}, {vr(V_A,4)}
    s_mov_b64 exec, 0xff
    ds_write_b128 v{T}, {vr(V_A,4)} offset:1024
    s_mov_b64 exec, 1
    ds_write_b32 v{T+2}, v{T+1}
    s_mov_b64 exec, -1
    """)

def bin_group(a, recs, skip):
    T = V_T
    a(f"v_mov_b32 v{T}, 1")
    for (r, sw, lb, by) in recs:
        a(f"""
        v_bfe_u32 v{V_POS+r}, v{lb}, {8*by}, 4
        v_bfe_u32 v{V_RK+r}, v{lb}, {8*by+4}, 4
        v_cmp_ne_u32 s[{S_MSK+2*r}:{S_MSK+2*r+1}], 15, v{V_POS+r}
        v_lshl_add_u32 v{V_EN+r}, v{V_RK+r}, 2, s{S_CCNT}
        """)
    for (r, sw, lb, by) in recs:
        a(f"s_mov_b64 exec, s[{S_MSK+2*r}:{S_MSK+2*r+1}]")
        a(f"ds_add_rtn_u32 v{V_EN+r}, v{V_EN+r}, v{T}")
    a("s_mov_b64 exec, -1")
    for (r, sw, lb, by) in recs:
        a(f"v_lshlrev_b32 v{V_POS+r}, v{V_POS+r}, 1")
    n = len(recs)
    for k, (r, sw, lb, by) in enumerate(recs):
        a(f"s_waitcnt lgkmcnt({n-1-k})")
        a(f"""
        v_min_u32 v{V_EN+r}, {TC-1}, v{V_EN+r}
        v_mad_u32_u24 v{V_RK+r}, v{V_RK+r}, s{S_CTC}, v{V_EN+r}
        v_lshl_add_u32 v{V_EN+r}, v{V_RK+r}, 2, s{S_CEL}
        v_lshl_add_u32 v{V_RK+r}, v{V_RK+r}, 1, s{S_COH}
        """)
    for (r, sw, lb, by) in recs:
        lab = a.new("BSK")
        a(f"s_mov_b64 exec, s[{S_MSK+2*r}:{S_MSK+2*r+1}]")
        if skip:
            a(f"s_cbranch_execz {lab}")
        a(f"""
        ds_write_b32 v{V_EN+r}, v{sw}
        ds_write_b16 v{V_RK+r}, v{V_POS+r}
        """)
        if skip:
            a.label(lab)
    a("s_mov_b64 exec, -1")

def count_read(a):
    L, T = V_LANE, V_T
    a(f"""
    v_and_b32 v{T}, 31, v{L}
    v_lshl_add_u32 v{T}, v{T}, 2, s{S_CCNT}
    ds_read_b32 v{T+1}, v{T}
    v_and_b32 v{T}, 16, v{L}
    v_cmp_eq_u32 s[{S_VM}:{S_VM+1}], 0, v{T}
    s_waitcnt lgkmcnt(0)
    v_readlane_b32 s{S_CNT}, v{T+1}, s{S_W}
    v_cmp_lt_u32 vcc, s{S_CTC}, v{T+1}
    s_and_b64 vcc, vcc, s[{S_VM}:{S_VM+1}]
    s_add_u32 s{S_NST}, s{S_CNT}, 31
    s_lshr_b32 s{S_NST}, s{S_NST}, 5
    s_cmp_lg_u64 vcc, 0
    s_cselect_b32 s{S_NST}, 0, s{S_NST}
    s_cselect_b32 s{S_MODE}, 2, 0
    s_sub_u32 s{S_HL}, s{S_CNT}, 1
    s_and_b32 s{S_HL}, s{S_HL}, 16
    """)

def p1(a):
    for half in range(2):
        for tt in range(2):
            for s in range(2):
                a(f"ds_read_b128 {vr(V_A+8*tt+4*s,4)}, v{V_WA} offset:{((2*half+tt)*2+s)*1024}")
        for tt in range(2):
            acc = V_ACA + 4 * (2 * half + tt)
            a(f"s_waitcnt lgkmcnt({2 if tt == 0 else 0})")
            a(f"v_mfma_f32_16x16x32_bf16 {vr(acc,4)}, {vr(V_A+8*tt,4)}, {vr(XB0,4)}, 0")
            a(f"v_mfma_f32_16x16x32_bf16 {vr(acc,4)}, {vr(V_A+8*tt+4,4)}, {vr(XB1,4)}, {vr(acc,4)}")

def p1_pack(a):
    for s in range(2):
        for h in range(2):
            acc = V_ACA + 4 * (2 * s + h)
            a(f"v_cvt_pk_bf16_f32 v{V_Q+4*s+2*h}, v{acc}, v{acc+1}")
            a(f"v_cvt_pk_bf16_f32 v{V_Q+4*s+2*h+1}, v{acc+2}, v{acc+3}")

def attn_reads(a, pairA, pairB):
    for mtl, pair in ((0, pairA), (1, pairB)):
        a(f"ds_read_b128 {vr(V_P2+8*mtl,4)}, v{V_P2A} offset:{pair*2048}")
        a(f"ds_read_b128 {vr(V_P2+8*mtl+4,4)}, v{V_P2B} offset:{pair*2048}")
    tr(a, 0, pairA)
    tr(a, 1, pairB)

def attn_compute(a, ks, keep_d1=False):
    D0, D1 = V_S + 8, (V_VO + 8 if keep_d1 else V_VO + 4)
    T = V_T
    a(f"""
    v_mfma_f32_16x16x32_bf16 {vr(D0,4)}, {vr(V_P2,4)}, {vr(V_Q,4)}, 0
    v_mfma_f32_16x16x32_bf16 {vr(D1,4)}, {vr(V_P2+8,4)}, {vr(V_Q,4)}, 0
    v_mfma_f32_16x16x32_bf16 {vr(D0,4)}, {vr(V_P2+4,4)}, {vr(V_Q+4,4)}, {vr(D0,4)}
    v_mfma_f32_16x16x32_bf16 {vr(D1,4)}, {vr(V_P2+12,4)}, {vr(V_Q+4,4)}, {vr(D1,4)}
    s_mov_b32 s{S_T0}, 0x3e38aa3b
    s_mov_b32 s{S_T1}, 0x3089705f
    s_nop 6
    """)
    for r in range(4):
        a(f"v_cndmask_b32 v{D0+r}, v{D0+r}, v{D1+r}, s[{S_B2}:{S_B2+1}]")
    for r in range(4):
        a(f"v_mul_f32 v{D0+r}, s{S_T0}, v{D0+r}")
    for r in range(4):
        a(f"v_exp_f32 v{D0+r}, v{D0+r}")
    a(f"""
    s_nop 0
    v_add_f32 v{T}, v{D0}, v{D0+1}
    v_add_f32 v{T+1}, v{D0+2}, v{D0+3}
    v_add_f32 v{T}, v{T}, v{T+1}
    v_add_f32 v{T}, s{S_T1}, v{T}
    v_rcp_f32 v{T}, v{T}
    s_nop 0
    v_mul_f32 v{D0}, v{T}, v{D0}
    v_mul_f32 v{D0+1}, v{T}, v{D0+1}
    v_mul_f32 v{D0+2}, v{T}, v{D0+2}
    v_mul_f32 v{D0+3}, v{T}, v{D0+3}
    v_cvt_pk_bf16_f32 v{T}, v{D0}, v{D0+2}
    v_cvt_pk_bf16_f32 v{T+1}, v{D0+1}, v{D0+3}
    v_cndmask_b32 v{D1}, 0, v{T}, s[{S_MA+4*ks}:{S_MA+4*ks+1}]
    v_cndmask_b32 v{D1+1}, 0, v{T+1}, s[{S_MA+4*ks}:{S_MA+4*ks+1}]
    v_cndmask_b32 v{D1+2}, 0, v{T}, s[{S_MA+4*ks+2}:{S_MA+4*ks+3}]
    v_cndmask_b32 v{D1+3}, 0, v{T+1}, s[{S_MA+4*ks+2}:{S_MA+4*ks+3}]
    s_nop 1
    """)
    mfma_agg(a, V_ACA, D1, zero=(ks == 0))

PRIO = 1
A0EARLY = 1
VOWN, XBA, VSIG = 36, 38, 40
def ea_stage(a):
    L, T = V_LANE, V_T
    a(f"""
    s_tmp_placeholder
    """.replace("s_tmp_placeholder", f"s_lshl_b32 s{S_T0}, s{S_W}, 8"))
    a(f"""
    s_add_u32 s{S_T0}, s{S_T0}, {EAA}
    v_lshl_add_u32 v{T+2}, v{L}, 2, s{S_T0}
    v_lshrrev_b32 v{T}, 2, v{L}
    v_cmp_gt_u32 vcc, s{S_NVAL}, v{T}
    v_mov_b32 v{T}, 0xffff
    v_lshrrev_b32 v{T+1}, 4, v{L}
    v_bfe_u32 v{T+3}, v{L}, 3, 1
    v_cndmask_b32 v{T}, v{T}, v{V_ES}, vcc
    ds_write_b32 v{T+2}, v{T}
    v_lshlrev_b32 v{T+1}, 4, v{T+1}
    v_lshl_add_u32 v{T+1}, v{T+3}, 3, v{T+1}
    v_add_u32 v{T+1}, s{S_T0}, v{T+1}
    """)
    for ks in range(2):
        for h in range(2):
            a(f"ds_read_b64 {vr(V_VO+4*ks+2*h,2)}, v{T+1} offset:{128*ks+64*h}")
    a(f"""
    v_lshrrev_b32 v{T}, 3, v{L}
    v_add_u32 v{T}, s{S_NODE0}, v{T}
    v_lshl_add_u32 v{VOWN}, v{T}, 7, v{V_CH}
    v_add_u32 v{T}, 8, v{T}
    v_lshl_add_u32 v{VOWN+1}, v{T}, 7, v{V_CH+1}
    v_and_b32 v{T}, 15, v{L}
    v_bfe_u32 v{T+1}, v{L}, 3, 1
    v_bfe_u32 v{T+2}, v{L}, 1, 1
    v_lshl_add_u32 v{T+1}, v{T+1}, 1, v{T+2}
    v_lshlrev_b32 v{T+1}, 1, v{T+1}
    v_lshrrev_b32 v{T+2}, 4, v{L}
    v_xor_b32 v{T+1}, v{T+1}, v{T+2}
    v_lshlrev_b32 v{T+1}, 4, v{T+1}
    v_lshl_add_u32 v{T}, v{T}, 7, v{T+1}
    v_add_u32 v{XBA}, s{S_RING}, v{T}
    v_xor_b32 v{XBA+1}, 64, v{XBA}
    s_waitcnt lgkmcnt(0)
    """)
    for q in range(8):
        a(f"v_mad_u32_u16 v{V_VO+q}, v{V_VO+q}, s{S_128}, v{V_CH+(q&1)}")

def local_steps(a):
    a(f"""
    s_cmp_eq_u32 s{S_NST}, 0
    s_cbranch_scc1 K_LOCAL_DONE
    s_cmp_eq_u32 s{S_NST}, 1
    s_cbranch_scc1 K_LAST0
    s_mov_b32 s{S_REM}, s{S_NST}
    s_cmp_eq_u32 s{S_NST}, 2
    s_cbranch_scc1 K_PEN0
    """)
    for ph in range(3):
        p0, p1_ = (1 + 2 * ph) % 3, (2 + 2 * ph) % 3
        a.label(f"K_FULL{ph}")
        if PRIO:
            lp = a.new("PR")
            if PRIO == 1:
                a(f"s_cmp_ge_u32 s{S_REM}, 5\ns_cbranch_scc1 {lp}\ns_setprio 2")
                a.label(lp)
            else:
                lq = a.new("PR")
                t1, t2 = {2: (6, 4), 3: (5, 4), 4: (7, 5), 5: (6, 5)}[PRIO]
                a(f"s_cmp_ge_u32 s{S_REM}, {t1}\ns_cbranch_scc1 {lp}\ns_setprio 2\ns_cmp_ge_u32 s{S_REM}, {t2}\ns_cbranch_scc1 {lp}\ns_setprio 1")
                a.label(lp)
        a("s_waitcnt vmcnt(4)")
        tr(a, 0, p0)
        entries_read(a, (ph + 2) * 128, (ph + 2) * 64)
        a("s_waitcnt lgkmcnt(4)")
        dma(a, ph, 1, p0, fill=(f"s_sub_u32 s{S_REM}, s{S_REM}, 1", "s_nop 0"))
        a("s_waitcnt vmcnt(4)")
        tr(a, 1, p1_)
        a("s_waitcnt lgkmcnt(4)")
        voff(a, (ph + 1) % 3)
        sbuild(a, (ph + 2) % 3)
        a("s_waitcnt lgkmcnt(0)")
        if ph == 2:
            dma(a, (ph + 1) % 3, 0, p1_, fill=(f"v_add_u32 v{V_E}, 384, v{V_E}", f"v_add_u32 v{V_O}, 192, v{V_O}"))
        else:
            dma(a, (ph + 1) % 3, 0, p1_)
        mfma_agg(a, V_ACL, V_S + 4 * ph)
        a(f"s_cmp_eq_u32 s{S_REM}, 2\ns_cbranch_scc1 K_PEN{(ph+1)%3}")
        if ph == 2:
            a("s_branch K_FULL0")
    for ph in range(3):
        p0, p1_ = (1 + 2 * ph) % 3, (2 + 2 * ph) % 3
        a.label(f"K_PEN{ph}")
        if PRIO: a("s_setprio 1" if PRIO == 1 else "s_setprio 0")
        a("s_waitcnt vmcnt(4)")
        tr(a, 0, p0)
        a("s_waitcnt lgkmcnt(0)")
        l0, l1 = a.new("PH"), a.new("PH")
        a(f"s_cmp_eq_u32 s{S_HL}, 0\ns_cbranch_scc1 {l0}")
        dma(a, ph, 1, p0)
        a(f"s_waitcnt vmcnt(4)\ns_branch {l1}")
        a.label(l0)
        a("s_waitcnt vmcnt(2)")
        a.label(l1)
        tr(a, 1, p1_)
        a("s_waitcnt lgkmcnt(0)")
        mfma_agg(a, V_ACL, V_S + 4 * ph)
        a(f"s_branch K_LAST{(ph+1)%3}")
    for ph in range(3):
        p0, p1_ = (1 + 2 * ph) % 3, (2 + 2 * ph) % 3
        a.label(f"K_LAST{ph}")
        if PRIO: a("s_setprio 0")
        l0, l1 = a.new("LH"), a.new("LH")
        a(f"s_cmp_eq_u32 s{S_HL}, 0\ns_cbranch_scc1 {l0}\ns_waitcnt vmcnt(2)\ns_branch {l1}")
        a.label(l0)
        a("s_waitcnt vmcnt(0)")
        a.label(l1)
        tr(a, 0, p0)
        a("s_waitcnt vmcnt(0)")
        tr(a, 1, p1_)
        a("s_waitcnt lgkmcnt(0)")
        mfma_agg(a, V_ACL, V_S + 4 * ph)
        if ph < 2:
            a("s_branch K_LOCAL_DONE")

def list_addr_init(a):
    L, T = V_LANE, V_T
    a(f"""
    s_mul_i32 s{S_T0}, s{S_W}, {TC*4}
    s_add_u32 s{S_T0}, s{S_T0}, {EL}
    v_lshrrev_b32 v{T}, 4, v{L}
    v_lshl_add_u32 v{V_E}, v{T}, 4, s{S_T0}
    s_mul_i32 s{S_T0}, s{S_W}, {TC*2}
    s_add_u32 s{S_T0}, s{S_T0}, {OH}
    v_lshl_add_u32 v{V_O}, v{T}, 3, s{S_T0}
    """)

def tile_from_dst(a, vd, vT, vL):
    a(f"""
    v_lshlrev_b32 v{vT}, 8, v{vd}
    s_mov_b32 s{S_T3}, 1369569
    v_mul_hi_u32_u24 v{vT}, s{S_T3}, v{vT}
    v_lshlrev_b32 v{vL}, 2, v{vd}
    s_mov_b32 s{S_T3}, -49
    v_mad_i32_i24 v{vL}, v{vT}, s{S_T3}, v{vL}
    v_lshrrev_b32 v{vL}, 2, v{vL}
    """)

def slow_path(a):
    L, T = V_LANE, V_T
    SW, LB = V_P2, V_P2 + 1
    a(f"""
    s_cmp_eq_u32 s{S_MODE}, 0
    s_cbranch_scc1 K_EPI
    s_cmp_eq_u32 s{S_MODE}, 1
    s_cbranch_scc1 K_SLOW_TOP
    s_cmp_eq_u32 s{S_MODE}, 3
    s_cselect_b32 s{S_SBI}, 1, 0
    s_mov_b32 s{S_OVCH}, 0
    s_mov_b32 s{S_OVJ}, 0
    """)
    a.label("K_SLOW_TOP")
    a("s_barrier")
    prefill_lists(a)
    list_addr_init(a)
    a(f"""
    v_mov_b32 v{LB}, -1
    v_mov_b32 v{SW}, 0xffff
    s_cmp_lg_u32 s{S_SBI}, 0
    s_cbranch_scc1 K_SLOW_RAW
    """)
    a.label("K_SLOW_CH")
    a(f"""
    s_cmp_ge_u32 s{S_OVCH}, {NB}
    s_cbranch_scc1 K_EPI_SLOW
    s_lshl_b32 s{S_T0}, s{S_OVCH}, 10
    s_lshl_b32 s{S_T1}, s{S_BK}, 2
    s_add_u32 s{S_T0}, s{S_T0}, s{S_T1}
    s_add_u32 s{S_T0}, s{S_T0}, {OFT}
    v_mov_b32 v{T}, 0
    buffer_load_dword v{T+1}, v{T}, s[{SWS}:{SWS+3}], s{S_T0} offen sc1
    s_waitcnt vmcnt(0)
    v_readfirstlane_b32 s{S_T1}, v{T+1}
    s_nop 3
    s_lshr_b32 s{S_T2}, s{S_T1}, 16              ; pieces
    s_and_b32 s{S_T1}, s{S_T1}, 0xffff
    s_cmp_lt_u32 s{S_OVJ}, s{S_T2}
    s_cbranch_scc1 K_SLOW_CH1
    s_add_u32 s{S_OVCH}, s{S_OVCH}, 1
    s_mov_b32 s{S_OVJ}, 0
    s_branch K_SLOW_CH
    """)
    a.label("K_SLOW_CH1")
    a(f"""
    v_lshrrev_b32 v{T}, 2, v{V_TID}
    v_add_u32 v{T}, s{S_OVJ}, v{T}
    v_and_b32 v{T+2}, 3, v{V_TID}                ; slot
    v_cmp_gt_u32 s[{S_VM}:{S_VM+1}], s{S_T2}, v{T}
    v_cmp_gt_u32 vcc, 3, v{T+2}
    s_and_b64 s[{S_VM}:{S_VM+1}], s[{S_VM}:{S_VM+1}], vcc
    v_cmp_gt_u32 vcc, 256, v{V_TID}
    s_and_b64 vcc, vcc, s[{S_VM}:{S_VM+1}]
    s_add_u32 s{S_OVJ}, s{S_OVJ}, 64
    v_add_u32 v{T}, s{S_T1}, v{T}
    v_lshlrev_b32 v{T+1}, 4, v{T}
    v_lshl_add_u32 v{T+3}, v{T+2}, 2, v{T+1}
    v_add_u32 v{T+1}, v{T+1}, v{T+2}             ; L offset - 12
    s_mul_i32 s{S_T1}, s{S_OVCH}, {NPC*16}
    s_add_u32 s{S_T1}, s{S_T1}, {DPG}
    s_and_saveexec_b64 s[{S_EX}:{S_EX+1}], vcc
    s_cbranch_execz K_SLOW_S1
    buffer_load_dword v{SW}, v{T+3}, s[{SWS}:{SWS+3}], s{S_T1} offen sc1
    buffer_load_ubyte v{LB}, v{T+1}, s[{SWS}:{SWS+3}], s{S_T1} offen offset:12 sc1
    """)
    a.label("K_SLOW_S1")
    a(f"""
    s_mov_b64 exec, s[{S_EX}:{S_EX+1}]
    s_waitcnt vmcnt(0)
    s_branch K_SLOW_BIN
    """)
    a.label("K_SLOW_RAW")
    a(f"""
    s_cmp_ge_u32 s{S_OVCH}, {E//256}
    s_cbranch_scc1 K_EPI_SLOW
    s_lshl_b32 s{S_T0}, s{S_OVCH}, 10
    s_add_u32 s{S_OVCH}, s{S_OVCH}, 1
    v_lshlrev_b32 v{T}, 2, v{V_TID}
    v_cmp_gt_u32 vcc, 256, v{V_TID}
    s_and_saveexec_b64 s[{S_EX}:{S_EX+1}], vcc
    s_cbranch_execz K_SLOW_O2
    """)
    srd(a, ST, P_DST, E * 4)
    srd(a, ST2, P_SRC, E * 4)
    a(f"""
    buffer_load_dword v{T+2}, v{T}, s[{ST}:{ST+3}], s{S_T0} offen
    buffer_load_dword v{SW}, v{T}, s[{ST2}:{ST2+3}], s{S_T0} offen
    """)
    srd(a, ST, P_DIS, N * 2)
    a(f"""
    s_waitcnt vmcnt(0)
    v_lshlrev_b32 v{T+3}, 1, v{SW}
    buffer_load_ushort v{T+3}, v{T+3}, s[{ST}:{ST+3}], 0 offen
    s_waitcnt vmcnt(0)
    v_lshl_or_b32 v{SW}, v{T+3}, 16, v{SW}
    """)
    tile_from_dst(a, T + 2, T, T + 1)
    a(f"""
    v_and_b32 v{T+4}, 15, v{T}
    v_lshl_or_b32 v{T+1}, v{T+4}, 4, v{T+1}
    v_lshrrev_b32 v{T}, 4, v{T}
    v_cmp_eq_u32 vcc, s{S_BK}, v{T}
    v_mov_b32 v{T}, 0xff
    s_nop 0
    v_cndmask_b32 v{LB}, v{T}, v{T+1}, vcc
    """)
    a.label("K_SLOW_O2")
    a(f"s_mov_b64 exec, s[{S_EX}:{S_EX+1}]")
    a.label("K_SLOW_BIN")
    a("s_waitcnt lgkmcnt(0)\ns_barrier")
    a(f"""
    v_bfe_u32 v{V_POS}, v{LB}, 0, 4
    v_bfe_u32 v{V_RK}, v{LB}, 4, 4
    v_cmp_ne_u32 s[{S_MSK}:{S_MSK+1}], 15, v{V_POS}
    v_lshl_add_u32 v{V_EN}, v{V_RK}, 2, s{S_CCNT}
    v_mov_b32 v{T}, 1
    s_mov_b64 exec, s[{S_MSK}:{S_MSK+1}]
    ds_add_rtn_u32 v{V_EN}, v{V_EN}, v{T}
    v_lshlrev_b32 v{V_POS}, v{V_POS}, 1
    s_waitcnt lgkmcnt(0)
    v_mad_u32_u24 v{V_RK}, v{V_RK}, s{S_CTC}, v{V_EN}
    v_lshl_add_u32 v{V_EN}, v{V_RK}, 2, s{S_CEL}
    v_lshl_add_u32 v{V_RK}, v{V_RK}, 1, s{S_COH}
    ds_write_b32 v{V_EN}, v{SW}
    ds_write_b16 v{V_RK}, v{V_POS}
    s_mov_b64 exec, -1
    s_waitcnt lgkmcnt(0)
    s_barrier
    """)
    count_read(a)
    a(f"s_mov_b32 s{S_MODE}, 1")
    entries_read(a, 0, 0)
    a("s_waitcnt lgkmcnt(0)")
    voff(a, 2)
    sbuild(a, 0)
    entries_read(a, 128, 64)
    a("s_waitcnt lgkmcnt(0)")
    voff(a, 0)
    sbuild(a, 1)
    cond_dma(a, 2, 0, 1, 0)
    cond_dma_l0h1(a, 2, 2)
    cond_dma(a, 0, 0, 0, 1)
    a("s_branch K_LOCAL")

STFLAG = ""
def epi_addr(a):
    L, T = V_LANE, V_T
    X = V_Q
    a(f"""
    v_and_b32 v{T}, 15, v{L}
    v_lshrrev_b32 v{T+1}, 5, v{L}
    v_and_b32 v{T+2}, 7, v{L}
    v_xor_b32 v{T+1}, v{T+1}, v{T+2}
    v_lshlrev_b32 v{T+1}, 4, v{T+1}
    v_lshl_add_u32 v{T}, v{T}, 7, v{T+1}
    v_bfe_u32 v{T+1}, v{L}, 4, 1
    v_lshl_add_u32 v{T}, v{T+1}, 3, v{T}
    v_add_u32 v{T}, s{S_RING}, v{T}
    v_xor_b32 v{T+1}, 32, v{T}
    v_xor_b32 v{T+2}, 64, v{T}
    v_xor_b32 v{T+3}, 96, v{T}
    v_lshl_add_u32 v{T+4}, v{L}, 4, s{S_RING}
    v_lshrrev_b32 v{X}, 3, v{L}
    v_and_b32 v{X+1}, 7, v{L}
    v_xor_b32 v{X+1}, v{X+1}, v{X}
    v_cmp_gt_u32 s[{S_MA}:{S_MA+1}], s{S_NVAL}, v{X}
    v_add_u32 v{X+2}, 8, v{X}
    v_cmp_gt_u32 s[{S_MA+2}:{S_MA+3}], s{S_NVAL}, v{X+2}
    v_add_u32 v{X}, s{S_NODE0}, v{X}
    v_lshlrev_b32 v{X}, 7, v{X}
    v_lshl_add_u32 v{T+5}, v{X+1}, 4, v{X}
    """)

def attn_out(a):
    BA = V_Q
    for half in range(2):
        for tt in range(2):
            for sx in range(2):
                a(f"ds_read_b128 {vr(V_P2+8*tt+4*sx,4)}, v{V_WA} offset:{16384+(2*(2*half+tt)+sx)*1024}")
        if half == 0:
            for sx in range(2):
                for h in range(2):
                    acc = V_ACA + 4 * (2 * sx + h)
                    a(f"v_cvt_pk_bf16_f32 v{BA+4*sx+2*h}, v{acc}, v{acc+1}")
                    a(f"v_cvt_pk_bf16_f32 v{BA+4*sx+2*h+1}, v{acc+2}, v{acc+3}")
        for tt in range(2):
            t = 2 * half + tt
            a(f"s_waitcnt lgkmcnt({2 if tt == 0 else 0})")
            a(f"v_mfma_f32_16x16x32_bf16 {vr(V_ACA+4*t,4)}, {vr(V_P2+8*tt,4)}, {vr(BA,4)}, 0")
            a(f"v_mfma_f32_16x16x32_bf16 {vr(V_ACA+4*t,4)}, {vr(V_P2+8*tt+4,4)}, {vr(BA+4,4)}, {vr(V_ACA+4*t,4)}")

def epilogue(a):
    L, T = V_LANE, V_T
    BL, OUTA = V_S, V_ACA
    for t in range(4):
        for sx in range(2):
            r = (V_P2 + 8 * t + 4 * sx) if t < 2 else (V_EN if sx == 0 else V_EN + 4) if t == 2 else (V_Q + 4 * sx)
            a(f"ds_read_b128 {vr(r,4)}, v{V_WA} offset:{8192+(2*t+sx)*1024}")
    a(f"v_lshlrev_b32 v{V_DIS}, 16, v{V_DIS}")
    a(f"""
    v_mov_b32 v{V_A+4}, {OOB}
    v_add_u32 v{V_A+3}, 1024, v{T+5}
    v_cndmask_b32 v{V_A+2}, v{V_A+4}, v{T+5}, s[{S_MA}:{S_MA+1}]
    v_cndmask_b32 v{V_A+3}, v{V_A+4}, v{V_A+3}, s[{S_MA+2}:{S_MA+3}]
    s_nop 2
    """)
    for i in range(16):
        a(f"v_mul_f32 v{V_ACL+i}, v{V_DIS}, v{V_ACL+i}")
    for s in range(2):
        for h in range(2):
            acc = V_ACL + 4 * (2 * s + h)
            a(f"v_cvt_pk_bf16_f32 v{BL+4*s+2*h}, v{acc}, v{acc+1}")
            a(f"v_cvt_pk_bf16_f32 v{BL+4*s+2*h+1}, v{acc+2}, v{acc+3}")
    a("s_waitcnt lgkmcnt(0)")
    for sx in range(2):
        for t in range(4):
            r = (V_P2 + 8 * t + 4 * sx) if t < 2 else (V_EN if sx == 0 else V_EN + 4) if t == 2 else (V_Q + 4 * sx)
            a(f"v_mfma_f32_16x16x32_bf16 {vr(OUTA+4*t,4)}, {vr(r,4)}, {vr(BL+4*sx,4)}, {vr(OUTA+4*t,4)}")
    a("s_nop 4")
    for t in range(4):
        acc = OUTA + 4 * t
        a(f"v_cvt_pk_bf16_f32 v{V_ACL+2*t}, v{acc}, v{acc+1}")
        a(f"v_cvt_pk_bf16_f32 v{V_ACL+2*t+1}, v{acc+2}, v{acc+3}")
        a(f"ds_write_b64 v{T+t}, {vr(V_ACL+2*t,2)}")
    a(f"""
    s_waitcnt lgkmcnt(0)
    ds_read_b128 {vr(V_ACA,4)}, v{T+4}
    ds_read_b128 {vr(V_ACA+4,4)}, v{T+4} offset:1024
    s_waitcnt lgkmcnt(1)
    buffer_store_dwordx4 {vr(V_ACA,4)}, v{V_A+2}, s[{SO}:{SO+3}], 0 offen{STFLAG}
    s_waitcnt lgkmcnt(0)
    buffer_store_dwordx4 {vr(V_ACA+4,4)}, v{V_A+3}, s[{SO}:{SO+3}], 0 offen{STFLAG}
    """)


KNAME = "standalone__hybrid_graph_tf_exphormer__graph_kernel"
K1FLAG = " sc1"
LDF = ""
RLF = " sc1"
POLL_MAX = 40000

def emit(a, opts):
    name = KNAME
    a.lines += [f".globl {name}", ".p2align 8", f".type {name},@function"]
    a.label(name)
    L, T = V_LANE, V_T
    a(f"""
    s_cmp_ge_u32 s2, {NB}
    s_cbranch_scc1 K_END
    s_load_dwordx4 s[{P_SRC}:{P_SRC+3}], s[0:1], 8
    s_load_dwordx2 s[{P_WS}:{P_WS+1}], s[0:1], 96
    s_load_dwordx2 s[{P_ES}:{P_ES+1}], s[0:1], 24
    s_load_dwordx2 s[{P_DIS}:{P_DIS+1}], s[0:1], 40
    s_load_dwordx4 s[{P_WL}:{P_WL+3}], s[0:1], 48
    s_load_dwordx4 s[{P_WK}:{P_WK+3}], s[0:1], 64
    s_load_dwordx2 s[{P_X}:{P_X+1}], s[0:1], 0
    s_load_dwordx2 s[{P_OUT}:{P_OUT+1}], s[0:1], 80
    s_load_dwordx2 s[{P_DBG}:{P_DBG+1}], s[0:1], 88
    """)
    if opts.get("ts"):
        a(f"s_memrealtime s[{S_TS}:{S_TS+1}]")
    a(f"""
    v_lshrrev_b32 v1, 6, v0
    v_mov_b32 v{V_TID}, v0
    v_readfirstlane_b32 s{S_W}, v1
    v_and_b32 v{L}, 63, v0
    v_lshlrev_b32 v3, 4, v0
    v_mov_b32 v1, {OOB}
    v_cmp_gt_u32 vcc, {CH//4}, v0
    s_mul_i32 s{S_T3}, s2, {CH*4}
    s_mul_i32 s{S_T0}, s{S_W}, 49
    v_cndmask_b32 v3, v1, v3, vcc
    s_and_b32 s{S_BK}, s2, 7
    s_lshl_b32 s{S_BK}, s{S_BK}, 5
    s_lshr_b32 s{S_T1}, s2, 3
    s_add_u32 s{S_BK}, s{S_BK}, s{S_T1}
    s_add_u32 s{S_T1}, s{S_T0}, 3
    s_lshr_b32 s{S_T1}, s{S_T1}, 2
    s_add_u32 s{S_T0}, s{S_T0}, 52
    s_lshr_b32 s{S_T0}, s{S_T0}, 2
    s_sub_u32 s{S_T0}, s{S_T0}, s{S_T1}
    s_mul_i32 s{S_NODE0}, s{S_BK}, {BK}
    s_add_u32 s{S_NODE0}, s{S_NODE0}, s{S_T1}
    s_sub_i32 s{S_T1}, {N}, s{S_NODE0}
    s_max_i32 s{S_T1}, s{S_T1}, 0
    s_min_i32 s{S_NVAL}, s{S_T0}, s{S_T1}
    s_mul_i32 s{S_RING}, s{S_W}, {RINGW}
    v_lshlrev_b32 v2, 2, v{L}
    s_lshl_b32 s{S_T2}, s{S_NODE0}, 4
    s_mov_b32 s{ST+2}, {E*4}
    s_mov_b32 s{ST+3}, 0x00020000
    s_mov_b32 s{ST2+2}, {E*4}
    s_mov_b32 s{ST2+3}, 0x00020000
    s_mov_b32 s{SWS+2}, {WS_REC}
    s_mov_b32 s{SWS+3}, 0x00020000
    s_waitcnt lgkmcnt(0)
    """)
    if opts.get("ts"):
        a(f"v_mov_b32 v{V_TSV}, 0\nv_writelane_b32 v{V_TSV}, s{S_TS}, 0\nv_writelane_b32 v{V_TSV}, s{S_TS+1}, 1")
    if opts.get("amp"):
        a(f"s_memrealtime s[{S_TS}:{S_TS+1}]\ns_waitcnt lgkmcnt(0)\nv_mov_b32 v{V_TSV}, 0\nv_writelane_b32 v{V_TSV}, s{S_TS}, 0")
    if opts.get("dbgts"):
        a(f"v_mov_b32 v{V_TSV}, 0")
        dstamp(a, 1, opts, neg=True)
        dstamp(a, 2, opts)
    a(f"""
    s_mov_b32 s{SWS}, s{P_WS}
    s_and_b32 s{SWS+1}, s{P_WS+1}, 0xffff
    s_mov_b32 s{ST}, s{P_DST}
    s_and_b32 s{ST+1}, s{P_DST+1}, 0xffff
    s_mov_b32 s{ST2}, s{P_SRC}
    s_and_b32 s{ST2+1}, s{P_SRC+1}, 0xffff
    s_cmp_lg_u32 s{S_W}, 0
    s_cbranch_scc1 K_NOCLR
    s_lshl_b32 s{S_T0}, s2, 7
    s_add_u32 s{S_T0}, s{S_T0}, {BAR}
    v_mov_b32 v12, 0
    s_mov_b64 exec, 1
    buffer_store_dword v12, v12, s[{SWS}:{SWS+3}], s{S_T0} offen sc1
    s_mov_b64 exec, -1
    """)
    a.label("K_NOCLR")
    a(f"""
    s_cmp_ge_u32 s{S_W}, 13
    s_cbranch_scc1 K_NOEDGELD
    buffer_load_dwordx4 v[4:7], v3, s[{ST}:{ST+3}], s{S_T3} offen{LDF}         ; dst
    buffer_load_dwordx4 v[8:11], v3, s[{ST2}:{ST2+3}], s{S_T3} offen{LDF}      ; src
    """)
    a.label("K_NOEDGELD")
    srd(a, ST, P_ES, 200000 * 4)
    a(f"buffer_load_dword v{V_ES}, v2, s[{ST}:{ST+3}], s{S_T2} offen{LDF}          ; esrc")
    a(f"""
    v_mov_b32 v14, -1
    v_lshlrev_b32 v13, 4, v{V_TID}
    v_add_u32 v13, {IMG+12}, v13
    ds_write_b32 v13, v14
    v_mov_b32 v18, 0
    v_lshlrev_b32 v19, 2, v{V_TID}
    v_add_u32 v19, {CN1}, v19
    s_cmp_ge_u32 s{S_W}, 4
    s_cbranch_scc1 K_INIT2
    ds_write_b32 v13, v14 offset:16384            ; pieces 1024..1279
    ds_write_b32 v19, v18
    s_cmp_lg_u32 s{S_W}, 0
    s_cbranch_scc1 K_INIT2
    v_mov_b32 v19, {POF+1028}
    ds_write_b32 v19, v18
    """)
    a.label("K_INIT2")
    a(f"""
    v_lshlrev_b32 v13, 4, v{V_TID}
    v_add_u32 v13, s{S_T3}, v13
    v_cmp_gt_u32 vcc, {E*4}, v13
    s_mov_b64 s[{A_VAL}:{A_VAL+1}], vcc
    v_cmp_gt_u32 vcc, {CH//4}, v{V_TID}
    s_and_b64 s[{A_VAL}:{A_VAL+1}], s[{A_VAL}:{A_VAL+1}], vcc
    s_waitcnt lgkmcnt(0)
    s_barrier
    """)
    stamp(a, 1, opts)
    a(f"s_cmp_lt_u32 s{S_W}, 13\ns_cbranch_scc1 K_DMADONE\ns_setprio 3")
    a(f"s_sub_u32 s{S_OVJ}, s{S_W}, 13\ns_mov_b32 s{S_T0}, s{S_OVJ}")
    srd(a, ST, P_DIS, N * 2)
    a(f"""
    s_lshr_b32 s{S_T1}, s2, 3
    s_mul_i32 s{S_T1}, s{S_T1}, 25
    s_lshr_b32 s{S_T1}, s{S_T1}, 5                ; rotation
    s_cmp_eq_u32 s{S_T0}, 2
    s_cselect_b32 s{S_T3}, 9, 8                   ; count
    s_mul_i32 s{S_T0}, s{S_T0}, 8
    s_add_u32 s{S_T1}, s{S_T1}, s{S_T0}
    v_lshlrev_b32 v12, 4, v{L}
    """)
    a.label("K_DISLOOP")
    a(f"""
    s_cmp_ge_u32 s{S_T1}, 25
    s_cselect_b32 s{S_T2}, 25, 0
    s_sub_u32 s{S_T1}, s{S_T1}, s{S_T2}
    s_lshl_b32 s{S_T2}, s{S_T1}, 12
    s_add_u32 m0, s{S_T2}, {DIS}
    s_cmp_eq_u32 s{S_T1}, 24
    s_addc_u32 s{S_T1}, s{S_T1}, 0
    buffer_load_dwordx4 v12, s[{ST}:{ST+3}], s{S_T2} offen lds
    buffer_load_dwordx4 v12, s[{ST}:{ST+3}], s{S_T2} offen offset:1024 lds
    s_cmp_eq_u32 s{S_T2}, {24*4096}
    s_cbranch_scc1 K_DISHALF
    buffer_load_dwordx4 v12, s[{ST}:{ST+3}], s{S_T2} offen offset:2048 lds
    buffer_load_dwordx4 v12, s[{ST}:{ST+3}], s{S_T2} offen offset:3072 lds
    s_add_u32 s{S_T1}, s{S_T1}, 1
    """)
    a.label("K_DISHALF")
    a(f"""
    s_sub_u32 s{S_T3}, s{S_T3}, 1
    s_cmp_lg_u32 s{S_T3}, 0
    s_cbranch_scc1 K_DISLOOP
    """)
    srd(a, ST, P_WQ, 8192)
    srd(a, ST2, P_WK, 8192)
    a(f"""
    s_mov_b32 s{S_T0}, s{S_OVJ}                   ; j
    v_bfe_u32 v12, v{L}, 4, 1
    v_and_b32 v13, 7, v{L}
    v_xor_b32 v12, v12, v13                       ; (l&7) ^ ((l>>4)&1)
    v_lshrrev_b32 v13, 3, v{L}
    v_lshlrev_b32 v13, 7, v13
    v_xor_b32 v14, 0, v12
    v_lshl_add_u32 v14, v14, 4, v13
    v_xor_b32 v15, 2, v12
    v_lshl_add_u32 v15, v15, 4, v13
    v_xor_b32 v16, 4, v12
    v_lshl_add_u32 v16, v16, 4, v13
    v_xor_b32 v17, 6, v12
    v_lshl_add_u32 v17, v17, 4, v13
    s_cmp_eq_u32 s{S_T0}, 2
    s_cbranch_scc1 K_WLV
    s_cmp_eq_u32 s{S_T0}, 0
    s_cselect_b32 s{ST}, s{ST}, s{ST2}
    s_cselect_b32 s{ST+1}, s{ST+1}, s{ST2+1}
    s_lshl_b32 s{S_T1}, s{S_T0}, 13
    s_add_u32 m0, s{S_T1}, {WQK}
    s_mov_b32 s{S_T2}, 0
    buffer_load_dwordx4 v14, s[{ST}:{ST+3}], s{S_T2} offen lds
    buffer_load_dwordx4 v15, s[{ST}:{ST+3}], s{S_T2} offen offset:1024 lds
    buffer_load_dwordx4 v16, s[{ST}:{ST+3}], s{S_T2} offen offset:2048 lds
    buffer_load_dwordx4 v17, s[{ST}:{ST+3}], s{S_T2} offen offset:3072 lds
    s_add_u32 m0, s{S_T1}, {WQK+4096}
    s_mov_b32 s{S_T2}, 4096
    buffer_load_dwordx4 v14, s[{ST}:{ST+3}], s{S_T2} offen lds
    buffer_load_dwordx4 v15, s[{ST}:{ST+3}], s{S_T2} offen offset:1024 lds
    buffer_load_dwordx4 v16, s[{ST}:{ST+3}], s{S_T2} offen offset:2048 lds
    buffer_load_dwordx4 v17, s[{ST}:{ST+3}], s{S_T2} offen offset:3072 lds
    """)
    a("s_branch K_WQ2")
    a.label("K_WLV")
    a(f"""
    v_bfe_u32 v12, v{L}, 4, 2
    v_lshlrev_b32 v12, 1, v12
    v_and_b32 v14, 7, v{L}
    v_xor_b32 v12, v12, v14
    v_lshl_add_u32 v14, v12, 4, v13
    """)
    for mi, P in enumerate((P_WL, P_WV)):
        a(f"s_mov_b32 s{ST}, s{P}\ns_and_b32 s{ST+1}, s{P+1}, 0xffff")
        for hf in range(2):
            a(f"s_mov_b32 m0, {WLVA + mi*8192 + hf*4096}\ns_mov_b32 s{S_T2}, {hf*4096}")
            for k in range(4):
                a(f"buffer_load_dwordx4 v14, s[{ST}:{ST+3}], s{S_T2} offen offset:{k*1024} lds")
    a.label("K_WQ2")
    a.label("K_DMADONE")
    stamp(a, 2, opts, 1)
    srd(a, SX, P_X, N * 128)
    srd(a, SO, P_OUT, N * 128)
    a(f"""
    s_mov_b32 s{S_PERM}, 0x07060302
    s_mov_b32 s{S_15}, 0x000f000f
    s_mov_b32 s{S_128}, 128
    v_bfe_u32 v{T}, v{L}, 4, 1
    v_lshlrev_b32 v{T}, 1, v{T}
    v_and_b32 v{T+1}, 7, v{L}
    v_xor_b32 v{T}, v{T}, v{T+1}
    v_lshlrev_b32 v{V_CH}, 4, v{T}
    v_xor_b32 v{V_CH+1}, 64, v{V_CH}
    v_and_b32 v{T}, 8, v{L}
    v_cmp_ne_u32 s[{S_U}:{S_U+1}], 0, v{T}
    v_and_b32 v{T}, 15, v{L}
    v_sub_u32 v{T}, 15, v{T}
    v_lshl_or_b32 v{V_SH}, v{T}, 16, v{T}
    v_bfe_u32 v{T}, v{L}, 3, 1
    v_lshrrev_b32 v{T+1}, 4, v{L}
    v_bfe_u32 v{T+2}, v{L}, 2, 1
    v_lshlrev_b32 v{T+3}, 3, v{T}
    v_lshl_add_u32 v{T+3}, v{T+1}, 1, v{T+3}
    v_add_u32 v{T+3}, v{T+3}, v{T+2}
    v_lshlrev_b32 v{T+3}, 7, v{T+3}
    v_and_b32 v{T+2}, 1, v{T+1}
    v_lshl_add_u32 v{T+2}, v{T}, 1, v{T+2}
    v_lshl_add_u32 v{T+3}, v{T+2}, 5, v{T+3}
    v_and_b32 v{T+2}, 3, v{L}
    v_lshl_add_u32 v{T+3}, v{T+2}, 3, v{T+3}
    v_add_u32 v{V_TR}, s{S_RING}, v{T+3}
    v_xor_b32 v{V_TR+1}, 32, v{V_TR}
    v_xor_b32 v{V_TR+2}, 64, v{V_TR}
    v_xor_b32 v{V_TR+3}, 96, v{V_TR}
    v_lshlrev_b32 v{V_WA}, 4, v{L}
    v_add_u32 v{V_WA}, {WM}, v{V_WA}
    v_mov_b32 v36, 0
    v_mov_b32 v37, 0
    v_mov_b32 v38, 0
    v_mov_b32 v39, 0
    v_mov_b32 v60, 0
    v_mov_b32 v61, 0
    v_mov_b32 v62, 0
    v_mov_b32 v63, 0
    v_mov_b32 v64, 0
    v_mov_b32 v65, 0
    v_mov_b32 v66, 0
    v_mov_b32 v67, 0
    v_and_b32 v{T}, 1, v{L}
    v_bfe_u32 v{T+1}, v{L}, 2, 2
    v_bfe_u32 v{T+2}, v{L}, 1, 1
    v_lshlrev_b32 v{T+3}, 3, v{T}
    v_lshl_add_u32 v{T+3}, v{T+1}, 1, v{T+3}
    v_add_u32 v{T+3}, v{T+3}, v{T+2}
    v_and_b32 v{T+1}, 1, v{T+1}
    v_lshl_add_u32 v{T}, v{T}, 1, v{T+1}
    v_lshlrev_b32 v{T}, 1, v{T}
    v_lshrrev_b32 v{T+1}, 4, v{L}
    v_xor_b32 v{T}, v{T}, v{T+1}
    v_lshlrev_b32 v{T}, 4, v{T}
    v_lshl_add_u32 v{T}, v{T+3}, 7, v{T}
    v_add_u32 v{V_P2A}, s{S_RING}, v{T}
    v_xor_b32 v{V_P2B}, 64, v{V_P2A}
    v_lshrrev_b32 v{T}, 4, v{L}
    v_and_b32 v{T+1}, 3, v{L}
    v_cmp_eq_u32 s[{S_VM}:{S_VM+1}], v{T}, v{T+1}
    v_and_b32 v{T}, 4, v{L}
    v_cmp_ne_u32 s[{S_B2}:{S_B2+1}], 0, v{T}
    v_and_b32 v{T}, 8, v{L}
    v_cmp_ne_u32 vcc, 0, v{T}
    s_andn2_b64 s[{S_MA}:{S_MA+1}], s[{S_VM}:{S_VM+1}], vcc
    s_and_b64 s[{S_MA+4}:{S_MA+5}], s[{S_VM}:{S_VM+1}], vcc
    s_and_b64 s[{S_MA+2}:{S_MA+3}], s[{S_MA}:{S_MA+1}], s[{S_B2}:{S_B2+1}]
    s_andn2_b64 s[{S_MA}:{S_MA+1}], s[{S_MA}:{S_MA+1}], s[{S_B2}:{S_B2+1}]
    s_and_b64 s[{S_MA+6}:{S_MA+7}], s[{S_MA+4}:{S_MA+5}], s[{S_B2}:{S_B2+1}]
    s_andn2_b64 s[{S_MA+4}:{S_MA+5}], s[{S_MA+4}:{S_MA+5}], s[{S_B2}:{S_B2+1}]
    """)
    list_addr_init(a)
    a(f"""
    v_bfe_u32 v40, v{L}, 2, 2
    v_and_b32 v41, 3, v{L}
    v_lshl_add_u32 v41, v40, 3, v41
    v_lshlrev_b32 v41, 7, v41
    v_bfe_u32 v42, v{L}, 1, 1
    v_lshl_add_u32 v40, v40, 1, v42
    v_lshrrev_b32 v42, 4, v{L}
    v_xor_b32 v40, v40, v42
    v_lshl_add_u32 v41, v40, 4, v41
    s_lshr_b32 s{S_T0}, s{S_W}, 2               ; t'
    s_bfe_u32 s{S_T1}, s{S_W}, 0x10001          ; s
    s_and_b32 s{S_T2}, s{S_W}, 1                ; hf
    s_lshl_b32 s{S_T1}, s{S_T1}, 5
    s_lshl_b32 s{S_T2}, s{S_T2}, 2
    s_add_u32 s{S_T1}, s{S_T1}, s{S_T2}
    s_lshl_b32 s{S_T1}, s{S_T1}, 7
    s_add_u32 s{S_T1}, s{S_T1}, {WQK}
    s_lshr_b32 s{S_T2}, s{S_T0}, 1
    s_lshl_b32 s{S_T2}, s{S_T2}, 5
    s_and_b32 s{S_T0}, s{S_T0}, 1
    s_lshl_b32 s{S_T0}, s{S_T0}, 2
    s_add_u32 s{S_T2}, s{S_T2}, s{S_T0}
    s_lshl_b32 s{S_T2}, s{S_T2}, 7
    s_add_u32 s{S_T2}, s{S_T2}, {WQK+8192}
    v_add_u32 v42, s{S_T1}, v41
    v_add_u32 v43, s{S_T2}, v41
    """)
    stamp(a, 3, opts, 1)
    a(f"""
    s_mov_b32 s{S_T0}, 1369569
    s_mov_b32 s{S_T1}, -49
    s_mov_b32 s{S_T2}, 43691
    s_mov_b32 s{S_CCNT}, {CN1}
    s_mov_b64 exec, s[{A_VAL}:{A_VAL+1}]
    s_cbranch_execz K_RANKED
    s_waitcnt vmcnt(2)
    """)
    stamp(a, 4, opts, 1)
    a(f"""
    s_cmp_lg_u32 s{S_W}, 0
    s_cbranch_scc1 K_NOINI
    s_mov_b64 exec, 1
    s_and_b32 s{S_T3}, s2, 3
    s_lshl_b32 s{S_T3}, s{S_T3}, 6
    v_mov_b32 v12, s{S_T3}
    v_mov_b32 v13, 1
    global_atomic_add v12, v13, s[{P_DBG}:{P_DBG+1}]
    s_mov_b64 exec, s[{A_VAL}:{A_VAL+1}]
    """)
    a.label("K_NOINI")
    for i in range(4):
        a(f"""
        v_lshlrev_b32 v{16+i}, 8, v{4+i}
        v_mul_hi_u32_u24 v{16+i}, s{S_T0}, v{16+i}
        v_lshrrev_b32 v{32+i}, 4, v{16+i}
        v_lshl_add_u32 v{28+i}, v{32+i}, 2, s{S_CCNT}
        """)
    a("v_mov_b32 v36, 1")
    for i in range(4):
        a(f"ds_add_rtn_u32 v{28+i}, v{28+i}, v36")
    for i in range(4):
        a(f"""
        v_lshlrev_b32 v{20+i}, 2, v{4+i}
        v_mad_i32_i24 v{20+i}, v{16+i}, s{S_T1}, v{20+i}
        v_lshrrev_b32 v{20+i}, 2, v{20+i}
        v_lshl_or_b32 v{20+i}, v{16+i}, 4, v{20+i}
        v_lshlrev_b32 v{32+i}, 2, v{32+i}
        v_add_u32 v{32+i}, {POF}, v{32+i}
        """)
    a("s_waitcnt lgkmcnt(0)")
    for i in range(4):
        a(f"""
        v_mul_u32_u24 v37, s{S_T2}, v{28+i}
        v_lshrrev_b32 v37, 17, v37
        v_mad_u32_u24 v{44+i}, v37, 13, v{28+i}
        v_add_lshl_u32 v{28+i}, v37, v{28+i}, 2
        """)
    a.label("K_RANKED")
    a(f"""
    s_mov_b64 exec, 1
    s_cmp_ge_u32 s{S_W}, 13
    s_cbranch_scc1 K_NODONE
    v_mov_b32 v12, {POF+1028}
    v_mov_b32 v13, 1
    ds_add_u32 v12, v13
    """)
    a.label("K_NODONE")
    a(f"""
    s_mov_b64 exec, -1
    s_cmp_lg_u32 s{S_W}, 0
    s_cbranch_scc1 K_NOSCAN
    s_setprio 3
    v_mov_b32 v12, {POF+1028}
    """)
    a.label("K_DONESPIN")
    a(f"""
    ds_read_b32 v13, v12
    s_waitcnt lgkmcnt(0)
    v_readfirstlane_b32 s{S_T0}, v13
    s_nop 3
    s_cmp_lt_u32 s{S_T0}, 13
    s_cbranch_scc1 K_DONESPIN
    v_lshlrev_b32 v12, 4, v{L}
    v_add_u32 v13, {CN1}, v12
    ds_read_b128 v[48:51], v13
    s_mov_b32 s{S_T2}, 43691
    s_waitcnt lgkmcnt(0)
    v_add_u32 v48, 2, v48
    v_add_u32 v49, 2, v49
    v_add_u32 v50, 2, v50
    v_add_u32 v51, 2, v51
    v_mul_u32_u24 v48, s{S_T2}, v48
    v_mul_u32_u24 v49, s{S_T2}, v49
    v_mul_u32_u24 v50, s{S_T2}, v50
    v_mul_u32_u24 v51, s{S_T2}, v51
    v_lshrrev_b32 v48, 17, v48
    v_lshrrev_b32 v49, 17, v49
    v_lshrrev_b32 v50, 17, v50
    v_lshrrev_b32 v51, 17, v51
    v_add_u32 v52, v48, v49
    v_add_u32 v53, v52, v50
    v_add_u32 v54, v53, v51
    v_mov_b32 v55, v54
    s_nop 1
    v_add_u32_dpp v55, v55, v55 row_shr:1 row_mask:0xf bank_mask:0xf
    s_nop 1
    v_add_u32_dpp v55, v55, v55 row_shr:2 row_mask:0xf bank_mask:0xf
    s_nop 1
    v_add_u32_dpp v55, v55, v55 row_shr:4 row_mask:0xf bank_mask:0xf
    s_nop 1
    v_add_u32_dpp v55, v55, v55 row_shr:8 row_mask:0xf bank_mask:0xf
    s_nop 1
    v_add_u32_dpp v55, v55, v55 row_bcast:15 row_mask:0xa bank_mask:0xf
    s_nop 1
    v_add_u32_dpp v55, v55, v55 row_bcast:31 row_mask:0xc bank_mask:0xf
    s_nop 1
    v_sub_u32 v56, v55, v54                       ; exclusive
    v_lshl_or_b32 v58, v48, 16, v56
    v_add_u32 v57, v56, v48
    v_lshl_or_b32 v59, v49, 16, v57
    v_add_u32 v57, v56, v52
    v_lshl_or_b32 v60, v50, 16, v57
    v_add_u32 v57, v56, v53
    v_lshl_or_b32 v61, v51, 16, v57
    v_add_u32 v13, {POF}, v12
    ds_write_b128 v13, v[58:61]
    v_mov_b32 v13, {POF+1024}
    s_mov_b32 exec_lo, 0
    s_mov_b32 exec_hi, 0x80000000
    ds_write_b32 v13, v55
    s_mov_b64 exec, -1
    """)
    a.label("K_NOSCAN")
    stamp(a, 2, opts)
    a(f"s_cmp_ge_u32 s{S_W}, 13\ns_cbranch_scc1 K_EA0\ns_waitcnt vmcnt(0)")
    ea_stage(a)
    a.label("K_EA0")
    stamp(a, 1, opts, 4)
    a(f"""
    s_cmp_eq_u32 s{S_W}, 15
    s_cbranch_scc1 K_BA1X
    s_cmp_ge_u32 s{S_W}, 13
    s_cbranch_scc1 K_BA1W
    s_waitcnt vmcnt(0) lgkmcnt(0)
    s_branch K_BA1
    """)
    TCH = 1 if opts.get("touch", 1) else 0
    a.label("K_BA1X")
    a(f"s_waitcnt vmcnt(16) lgkmcnt(0)\ns_branch K_BA1")
    a.label("K_BA1W")
    a(f"s_waitcnt vmcnt(8) lgkmcnt(0)")
    a.label("K_BA1")
    a("s_barrier\ns_setprio 0")
    stamp(a, 5, opts, 1)
    stamp(a, 2, opts, 4)
    if opts.get("touch", 1):
        a(f"""
        s_cmp_lt_u32 s{S_W}, 13
        s_cbranch_scc1 K_TOUCHED
        s_mul_i32 s{S_T1}, s{S_BK}, {BK*128}
        s_lshl_b32 s{S_T2}, s{S_OVJ}, 13
        s_add_u32 s{S_T1}, s{S_T1}, s{S_T2}
        s_mov_b32 s{ST}, s{P_X}
        s_and_b32 s{ST+1}, s{P_X+1}, 0xffff
        s_mov_b32 s{ST+2}, {N*128}
        v_lshlrev_b32 v12, 7, v{L}
        buffer_load_dword v80, v12, s[{ST}:{ST+3}], s{S_T1} offen
        s_cmp_lg_u32 s{S_OVJ}, 2
        s_cbranch_scc1 K_TOUCHED
        s_add_u32 s{S_T1}, s{S_T1}, 8192
        s_mov_b64 exec, 0xf
        buffer_load_dword v81, v12, s[{ST}:{ST+3}], s{S_T1} offen
        s_mov_b64 exec, -1
        """)
        a.label("K_TOUCHED")
    a(f"s_cmp_lt_u32 s{S_W}, 13\ns_cbranch_scc1 K_EA1")
    ea_stage(a)
    a.label("K_EA1")
    a(f"""
    s_cmp_lg_u32 s{S_W}, 0
    s_cbranch_scc1 K_NOINI2
    v_lshlrev_b32 v{V_INI-3}, 6, v{L}
    s_mov_b64 exec, 0xf
    global_load_dword v{V_INI}, v{V_INI-3}, s[{P_DBG}:{P_DBG+1}] sc1
    s_mov_b64 exec, -1
    """)
    a.label("K_NOINI2")
    a(f"""
    v_and_b32 v{V_DIS}, 15, v{L}
    v_add_u32 v{V_DIS}, s{S_NODE0}, v{V_DIS}
    v_lshlrev_b32 v{V_DIS}, 1, v{V_DIS}
    ds_read_u16 v{V_DIS}, v{V_DIS} offset:{DIS}
    s_mov_b64 exec, s[{A_VAL}:{A_VAL+1}]
    s_cbranch_execz K_NOEDGE
    """)
    for i in range(4):
        a(f"v_lshlrev_b32 v{24+i}, 1, v{8+i}\nds_read_b32 v{32+i}, v{32+i}\nds_read_u16 v{24+i}, v{24+i} offset:{DIS}")
    a("s_waitcnt lgkmcnt(0)")
    for i in range(4):
        a(f"""
        v_and_b32 v{32+i}, 0xffff, v{32+i}
        v_lshlrev_b32 v{32+i}, 4, v{32+i}
        v_lshl_or_b32 v{24+i}, v{24+i}, 16, v{8+i}
        v_add_u32 v{32+i}, {IMG}, v{32+i}
        v_add_u32 v{28+i}, v{28+i}, v{32+i}
        v_add_u32 v{44+i}, v{44+i}, v{32+i}
        ds_write_b32 v{28+i}, v{24+i}
        ds_write_b8 v{44+i}, v{20+i} offset:12
        """)
    a.label("K_NOEDGE")
    a("s_mov_b64 exec, -1")
    stamp(a, 3, opts, 4)
    a(f"""
    s_mov_b64 exec, -1
    s_cmp_lt_u32 s{S_W}, 13
    s_cbranch_scc1 K_BA2W
    s_cmp_eq_u32 s{S_W}, 15
    s_cbranch_scc1 K_BA2X
    s_waitcnt vmcnt({TCH})
    s_branch K_BA2W
    """)
    a.label("K_BA2X")
    a(f"s_waitcnt vmcnt({2*TCH})")
    a.label("K_BA2W")
    a(f"""
    s_waitcnt lgkmcnt(0)
    s_barrier
    """)
    stamp(a, 3, opts)
    stamp(a, 4, opts, 4)
    dstamp(a, 3, opts)
    if opts.get("amp") == 3:
        a(f"s_memrealtime s[{S_TS}:{S_TS+1}]\ns_waitcnt lgkmcnt(0)\nv_writelane_b32 v{V_TSV}, s{S_TS}, 1")
    a(f"""
    v_mov_b32 v29, {POF+1024}
    ds_read_b32 v30, v29
    v_lshlrev_b32 v6, 4, v{V_TID}
    v_add_u32 v7, {IMG}, v6
    ds_read_b128 v[8:11], v7
    ds_read_b128 v[12:15], v7 offset:16384
    v_xor_b32 v40, 64, v42
    v_xor_b32 v41, 64, v43
    ds_read_b128 v[44:47], v42
    ds_read_b128 v[48:51], v43
    ds_read_b128 v[52:55], v40
    ds_read_b128 v[56:59], v41
    s_mul_i32 s{S_T0}, s2, {NPC*16}
    v_mov_b32 v28, {OOB}
    v_add_u32 v19, 1024, v{V_TID}
    v_add_u32 v18, 16384, v6
    s_waitcnt lgkmcnt(6)
    v_cmp_gt_u32 vcc, v30, v{V_TID}
    v_cmp_gt_u32 s[{A_TMP}:{A_TMP+1}], v30, v19
    v_readfirstlane_b32 s{S_T1}, v30
    v_cndmask_b32 v6, v28, v6, vcc
    v_cndmask_b32 v18, v28, v18, s[{A_TMP}:{A_TMP+1}]
    s_waitcnt lgkmcnt(5)
    buffer_store_dwordx4 v[8:11], v6, s[{SWS}:{SWS+3}], s{S_T0} offen{K1FLAG}
    s_lshl_b32 s{S_T2}, s{S_W}, 6
    s_add_u32 s{S_T2}, s{S_T2}, 1024
    s_cmp_ge_u32 s{S_T2}, s{S_T1}
    s_cbranch_scc1 K_NOST2
    s_waitcnt lgkmcnt(4)
    buffer_store_dwordx4 v[12:15], v18, s[{SWS}:{SWS+3}], s{S_T0} offen{K1FLAG}
    """)
    a.label("K_NOST2")
    a(f"""
    s_cmp_lg_u32 s{S_W}, 15
    s_cbranch_scc1 K_NOOFT
    v_lshlrev_b32 v20, 4, v{L}
    v_add_u32 v21, {POF}, v20
    ds_read_b128 v[24:27], v21
    s_lshl_b32 s{S_T2}, s2, 10
    s_add_u32 s{S_T2}, s{S_T2}, {OFT}
    s_waitcnt lgkmcnt(0)
    buffer_store_dwordx4 v[24:27], v20, s[{SWS}:{SWS+3}], s{S_T2} offen{K1FLAG}
    """)
    a.label("K_NOOFT")
    a(f"""
    ; W_l / W_v operand quad of this wave: matrix w>>3, t = (w>>1)&3, s = w&1
    v_lshrrev_b32 v20, 4, v{L}
    v_bfe_u32 v21, v{L}, 2, 2
    v_lshl_add_u32 v22, v20, 2, v21
    v_lshlrev_b32 v22, 7, v22
    v_and_b32 v20, 1, v20
    v_lshrrev_b32 v21, 1, v21
    v_lshl_add_u32 v20, v20, 1, v21
    s_bfe_u32 s{S_T0}, s{S_W}, 0x20001
    v_xor_b32 v20, s{S_T0}, v20
    v_lshl_add_u32 v22, v20, 5, v22
    v_and_b32 v20, 3, v{L}
    v_lshl_add_u32 v22, v20, 3, v22
    s_lshr_b32 s{S_T0}, s{S_W}, 3
    s_lshl_b32 s{S_T0}, s{S_T0}, 13
    s_and_b32 s{S_T1}, s{S_W}, 1
    s_lshl_b32 s{S_T1}, s{S_T1}, 12
    s_add_u32 s{S_T0}, s{S_T0}, s{S_T1}
    s_add_u32 s{S_T0}, s{S_T0}, {WLVA}
    v_add_u32 v22, s{S_T0}, v22
    ds_read_b64_tr_b16 v[68:69], v22
    ds_read_b64_tr_b16 v[70:71], v22 offset:2048
    s_waitcnt lgkmcnt(0)
    v_mfma_f32_16x16x32_bf16 v[76:79], v[44:47], v[48:51], 0
    v_mfma_f32_16x16x32_bf16 v[76:79], v[52:55], v[56:59], v[76:79]
    """)
    stamp(a, 5, opts, 4)
    a("""
    s_barrier
    """)
    stamp(a, 6, opts, 4)
    stamp(a, 4, opts)
    stamp(a, 6, opts, 2)
    if opts.get("drainx"):
        a("s_waitcnt vmcnt(0)")
        stamp(a, 11, opts)
    a(f"""
    s_lshl_b32 s{S_T0}, s{S_W}, 10
    v_add_u32 v{T}, s{S_T0}, v{V_WA}
    ds_write_b128 v{T}, v[68:71] offset:8192
    s_lshr_b32 s{S_T0}, s{S_W}, 1
    s_lshl_b32 s{S_T0}, s{S_T0}, 10
    s_and_b32 s{S_T1}, s{S_W}, 1
    s_lshl_b32 s{S_T1}, s{S_T1}, 3
    s_add_u32 s{S_T0}, s{S_T0}, s{S_T1}
    v_add_u32 v{T+1}, s{S_T0}, v{V_WA}
    v_mul_u32_u24 v{VSIG}, {NSH*128}, v{L}
    v_mov_b32 v{VSIG+1}, 1
    v_cvt_pk_bf16_f32 v{V_MT}, v76, v77
    v_cvt_pk_bf16_f32 v{V_MT+1}, v78, v79
    ds_write_b64 v{T+1}, {vr(V_MT,2)}
    """)
    prefill_lists(a)
    a(f"""
    s_mov_b32 s{S_CCNT}, {CNT}
    s_mov_b32 s{S_CEL}, {EL}
    s_mov_b32 s{S_COH}, {OH}
    s_mov_b32 s{S_CTC}, {TC}
    s_mov_b32 s{S_SBI}, 0                          ; 1: hand-off gave up
    s_and_b32 s{S_OVJ}, s2, {NSH-1}
    s_lshl_b32 s{S_OVJ}, s{S_OVJ}, 7
    s_add_u32 s{S_OVJ}, s{S_OVJ}, {BAR}
    s_cmp_lg_u32 s{S_W}, 0
    s_cbranch_scc1 K_INIOK
    s_mov_b32 s{S_T0}, 0
    v_lshlrev_b32 v{V_INI-3}, 6, v{L}
    s_waitcnt vmcnt(0)
    """)
    a.label("K_INICHK")
    a(f"""
    v_cmp_ne_u32 vcc, 64, v{V_INI}
    s_and_b64 vcc, vcc, 0xf
    s_cmp_eq_u64 vcc, 0
    s_cbranch_scc1 K_INIOK
    s_add_u32 s{S_T0}, s{S_T0}, 1
    s_cmp_lt_u32 s{S_T0}, {opts.get("pollmax", POLL_MAX)}
    s_cbranch_scc0 K_INIFAIL
    s_sleep 1
    s_mov_b64 exec, 0xf
    global_load_dword v{V_INI}, v{V_INI-3}, s[{P_DBG}:{P_DBG+1}] sc1
    s_mov_b64 exec, -1
    s_waitcnt vmcnt(0)
    s_branch K_INICHK
    """)
    a.label("K_INIFAIL")
    a(f"s_mov_b32 s{S_SBI}, 1")
    a.label("K_INIOK")
    a(f"""
    s_cmp_lg_u32 s{S_W}, 0
    s_cbranch_scc1 K_NOFLG
    v_mov_b32 v{T}, {CNT+68}
    v_mov_b32 v{T+1}, s{S_SBI}
    ds_write_b32 v{T}, v{T+1}                      ; 1: give up on the hand-off
    """)
    a.label("K_NOFLG")
    stamp(a, 7, opts, 4)
    stamp(a, 4, opts, 2)
    a("s_waitcnt vmcnt(0) lgkmcnt(0)\ns_barrier")
    a(f"""
    s_cmp_lg_u32 s{S_W}, 0
    s_cbranch_scc1 K_NOSIG
    {"s_mov_b32 exec_hi, 0" if NREP == 32 else ("s_mov_b64 exec, 0xffff" if NREP == 16 else "s_mov_b64 exec, -1")}
    buffer_atomic_add v{VSIG+1}, v{VSIG}, s[{SWS}:{SWS+3}], s{S_OVJ} offen
    s_mov_b64 exec, -1
    """)
    a.label("K_NOSIG")
    stamp(a, 8, opts, 4)
    dstamp(a, 4, opts)
    stamp(a, 5, opts)
    stamp(a, 3, opts, 3)
    a(f"""
    s_add_u32 m0, s{S_RING}, {2*2048}
    s_nop 0
    buffer_load_dwordx4 v{VOWN}, s[{SX}:{SX+3}], 0 offen lds
    s_add_u32 m0, s{S_RING}, {2*2048+1024}
    s_nop 0
    buffer_load_dwordx4 v{VOWN+1}, s[{SX}:{SX+3}], 0 offen lds
    """)
    dma(a, 0, 0, 0)
    a(f"""
    v_mov_b32 v{T+1}, {CNT+68}
    ds_read_b32 v{T+2}, v{T+1}
    v_lshrrev_b32 v{T}, 2, v{L}
    v_lshlrev_b32 v{T}, 4, v{T}
    v_add_u32 v{T}, s{S_W}, v{T}
    v_lshlrev_b32 v{V_EN}, 10, v{T}
    s_mov_b32 s{S_T0}, {NPC*16}
    v_mul_u32_u24 v{V_EN+1}, s{S_T0}, v{T}
    v_and_b32 v{V_EN+2}, 3, v{L}                   ; p
    s_lshl_b32 s{S_T3}, s{S_BK}, 2
    s_add_u32 s{S_T3}, s{S_T3}, {OFT}
    s_mov_b32 s{S_MODE}, 0
    s_and_b32 s{S_T1}, s2, {NREP-1}
    s_mul_i32 s{S_T1}, s{S_T1}, {NSH*128}
    s_lshl_b32 s{S_T2}, s{S_W}, 7
    s_add_u32 s{S_T1}, s{S_T1}, s{S_T2}
    s_add_u32 s{S_T1}, s{S_T1}, {BAR}
    s_add_u32 s{S_EX}, s{P_WS}, s{S_T1}
    s_addc_u32 s{S_EX+1}, s{P_WS+1}, 0
    s_waitcnt lgkmcnt(0)
    v_readfirstlane_b32 s{S_SBI}, v{T+2}
    """)
    def xpart(which):
        if which & 1:
            a(f"""
            ds_read_b128 {vr(XB0,4)}, v{XBA} offset:4096
            ds_read_b128 {vr(XB1,4)}, v{XBA+1} offset:4096
            s_waitcnt lgkmcnt(0)
            """)
            p1(a)
            a("s_nop 2")
            p1_pack(a)
        if which & 2:
            attn_reads(a, 0, 1)
            a("s_waitcnt lgkmcnt(0)")
            attn_compute(a, 0, keep_d1=True)
    PRE = 1
    a("s_waitcnt vmcnt(2)")
    xpart(1)
    a(f"""
    s_mov_b32 s{S_T0}, 0
    s_cmp_lg_u32 s{S_SBI}, 0
    s_cbranch_scc1 K_POLL_DONE
    """)
    a.label("K_POLL")
    a(f"""
    s_load_dword s{S_T1}, s[{S_EX}:{S_EX+1}], 0 glc
    s_add_u32 s{S_T0}, s{S_T0}, 1
    s_waitcnt lgkmcnt(0)
    s_cmp_eq_u32 s{S_T1}, {256//NSH}
    s_cbranch_scc1 K_POLL_DONE
    s_cmp_lt_u32 s{S_T0}, {opts.get("pollmax", POLL_MAX)}
    s_cbranch_scc1 K_POLL
    s_mov_b32 s{S_SBI}, 1
    v_mov_b32 v{T}, {CNT+68}
    v_mov_b32 v{T+1}, 1
    ds_write_b32 v{T}, v{T+1}
    """)
    a.label("K_POLL_DONE")
    stamp(a, 6, opts)
    stamp(a, 4, opts, 3)
    a(f"""
    buffer_load_dword v{PO}, v{V_EN}, s[{SWS}:{SWS+3}], s{S_T3} offen sc1
    """)
    dma(a, 0, 1, 1)
    a(f"""
    v_mov_b32 v{T+2}, {OOB}
    s_waitcnt vmcnt(2)
    """)
    stamp(a, 5, opts, 3)
    a(f"""
    v_and_b32 v{T}, 0xffff, v{PO}
    v_lshrrev_b32 v{PO}, 16, v{PO}                ; pieces
    v_add_u32 v{T}, v{T}, v{V_EN+2}
    v_lshl_add_u32 v{PA}, v{T}, 4, v{V_EN+1}
    v_cmp_gt_u32 s[{S_EX}:{S_EX+1}], v{PO}, v{V_EN+2}
    v_add_u32 v{T+1}, 4, v{V_EN+2}
    v_cmp_gt_u32 s[{S_VM}:{S_VM+1}], v{PO}, v{T+1}
    s_cmp_lg_u32 s{S_SBI}, 0
    s_cselect_b64 s[{S_EX}:{S_EX+1}], 0, s[{S_EX}:{S_EX+1}]
    s_cselect_b64 s[{S_VM}:{S_VM+1}], 0, s[{S_VM}:{S_VM+1}]
    v_add_u32 v{T+1}, 64, v{PA}
    v_cndmask_b32 v{T}, v{T+2}, v{PA}, s[{S_EX}:{S_EX+1}]
    v_cndmask_b32 v{T+1}, v{T+2}, v{T+1}, s[{S_VM}:{S_VM+1}]
    buffer_load_dwordx4 {vr(V_SW,4)}, v{T}, s[{SWS}:{SWS+3}], 0 offen{RLF}
    buffer_load_dwordx4 {vr(V_SW+4,4)}, v{T+1}, s[{SWS}:{SWS+3}], 0 offen{RLF}
    """)
    if not (PRE & 2):
        a("s_waitcnt vmcnt(2)")
        xpart(2)
    a("s_waitcnt vmcnt(0)")
    stamp(a, 6, opts, 3)
    dma(a, 1, 0, 2)
    a(f"""
    s_cmp_lg_u32 s{S_SBI}, 0
    s_cbranch_scc1 K_NOBIN
    v_cndmask_b32 v{V_SW+3}, -1, v{V_SW+3}, s[{S_EX}:{S_EX+1}]
    v_cndmask_b32 v{V_SW+7}, -1, v{V_SW+7}, s[{S_VM}:{S_VM+1}]
    """)
    recs = [(0, V_SW, V_SW+3, 0), (1, V_SW+1, V_SW+3, 1), (2, V_SW+2, V_SW+3, 2),
            (3, V_SW+4, V_SW+7, 0), (4, V_SW+5, V_SW+7, 1), (5, V_SW+6, V_SW+7, 2)]
    bin_group(a, recs, False)
    a(f"""
    v_mov_b32 v{V_S+2}, v{V_EN+8}
    """) if False else None
    a.label("K_MORE")
    a(f"""
    v_cmp_lt_u32 vcc, 8, v{PO}
    s_cmp_eq_u64 vcc, 0
    s_cbranch_scc1 K_NOBIN
    v_subrev_u32 v{PO}, 8, v{PO}
    v_max_i32 v{PO}, 0, v{PO}
    v_add_u32 v{PA}, 128, v{PA}
    v_and_b32 v{T}, 3, v{V_TID}
    v_cmp_gt_u32 s[{S_EX}:{S_EX+1}], v{PO}, v{T}
    v_add_u32 v{T}, 4, v{T}
    v_cmp_gt_u32 s[{S_VM}:{S_VM+1}], v{PO}, v{T}
    v_mov_b32 v{T+2}, {OOB}
    v_add_u32 v{T+1}, 64, v{PA}
    v_cndmask_b32 v{T}, v{T+2}, v{PA}, s[{S_EX}:{S_EX+1}]
    v_cndmask_b32 v{T+1}, v{T+2}, v{T+1}, s[{S_VM}:{S_VM+1}]
    buffer_load_dwordx4 {vr(V_SW,4)}, v{T}, s[{SWS}:{SWS+3}], 0 offen{RLF}
    buffer_load_dwordx4 {vr(V_SW+4,4)}, v{T+1}, s[{SWS}:{SWS+3}], 0 offen{RLF}
    s_waitcnt vmcnt(0)
    v_cndmask_b32 v{V_SW+3}, -1, v{V_SW+3}, s[{S_EX}:{S_EX+1}]
    v_cndmask_b32 v{V_SW+7}, -1, v{V_SW+7}, s[{S_VM}:{S_VM+1}]
    """)
    bin_group(a, recs, True)
    a("s_branch K_MORE")
    a.label("K_NOBIN")
    la = a.new("SKA")
    a(f"s_cmp_le_u32 s{S_NVAL}, 12\ns_cbranch_scc1 {la}")
    dma(a, 1, 1, 0)
    a.label(la)
    for i in range(16):
        a(f"v_mov_b32 v{V_ACL+i}, 0")
    stamp(a, 7, opts, 3)
    a("s_waitcnt lgkmcnt(0)\ns_barrier")
    dstamp(a, 6, opts)
    if opts.get("amp") == 4:
        a(f"s_memrealtime s[{S_TS}:{S_TS+1}]\ns_waitcnt lgkmcnt(0)\nv_writelane_b32 v{V_TSV}, s{S_TS}, 1")
    stamp(a, 7, opts)
    stamp(a, 8, opts, 3)
    if PRIO: a("s_setprio 3")
    a(f"""
    v_mov_b32 v{T+2}, {CNT+68}
    ds_read_b32 v{T+3}, v{T+2}
    """)
    count_read(a)
    a(f"""
    v_readfirstlane_b32 s{S_SBI}, v{T+3}
    s_nop 3
    s_cmp_lg_u32 s{S_SBI}, 0
    s_cselect_b32 s{S_NST}, 0, s{S_NST}
    s_cselect_b32 s{S_MODE}, 3, s{S_MODE}
    """)
    entries_read(a, 0, 0)
    a("s_waitcnt lgkmcnt(0)")
    voff(a, 2)
    cond_dma(a, 2, 0, 1, 0)
    sbuild(a, 0)
    entries_read(a, 128, 64)
    l0, l1 = a.new("WV"), a.new("WV")
    a(f"s_cmp_eq_u32 s{S_NST}, 0\ns_cbranch_scc1 {l0}\ns_waitcnt vmcnt(2)\ns_branch {l1}")
    a.label(l0); a("s_waitcnt vmcnt(0)"); a.label(l1)
    a("s_waitcnt lgkmcnt(0)")
    voff(a, 0)
    sbuild(a, 1)
    attn_reads(a, 2, 0)
    a("s_waitcnt lgkmcnt(0)")
    cond_dma_l0h1(a, 2, 2)
    cond_dma(a, 0, 0, 0, 1)
    attn_compute(a, 1)
    stamp(a, 8, opts)
    epi_addr(a)
    attn_out(a)
    a.label("K_LOCAL")
    local_steps(a)
    a.label("K_LOCAL_DONE")
    slow_path(a)
    a.label("K_EPI_SLOW")
    epi_addr(a)
    a.label("K_EPI")
    dstamp(a, 7, opts)
    stamp(a, 9, opts)
    epilogue(a)
    if opts.get("dbgts"):
        a("s_waitcnt vmcnt(0)")
        dstamp(a, 8, opts)
        a(f"v_writelane_b32 v{V_TSV}, s{S_MODE}, 9")
        dflush(a, opts, 9)
    if opts.get("ts"):
        a("s_waitcnt vmcnt(0)")
        stamp(a, 10, opts)
    if opts.get("amp"):
        k = opts["amp"]
        a("s_waitcnt vmcnt(0)")
        if k == 1:
            a(f"s_memrealtime s[{S_TS}:{S_TS+1}]\ns_waitcnt lgkmcnt(0)\nv_writelane_b32 v{V_TSV}, s{S_TS}, 1")
        a(f"""
        s_memrealtime s[{S_TS}:{S_TS+1}]
        v_readlane_b32 s{S_T0}, v{V_TSV}, 0
        v_readlane_b32 s{S_T1}, v{V_TSV}, 1
        s_waitcnt lgkmcnt(0)
        s_sub_u32 s{S_T1}, s{S_T1}, s{S_T0}
        s_mul_i32 s{S_T1}, s{S_T1}, {opts.get("ampk", 1)}
        s_add_u32 s{S_T1}, s{S_T1}, s{S_TS}
        """)
        a.label("K_AMPSP")
        a(f"""
        s_memrealtime s[{S_TS}:{S_TS+1}]
        s_waitcnt lgkmcnt(0)
        s_sub_u32 s{S_T2}, s{S_TS}, s{S_T1}
        s_cmp_lt_i32 s{S_T2}, 0
        s_cbranch_scc1 K_AMPSP
        """)
    stamps_flush(a, opts, 12)
    a.label("K_END")
    a("s_endpgm")
    return name


def kd(name, vgpr, sgpr):
    return f""".amdhsa_kernel {name}
  .amdhsa_next_free_vgpr {vgpr}
  .amdhsa_next_free_sgpr {sgpr}
  .amdhsa_accum_offset {vgpr}
  .amdhsa_group_segment_fixed_size 0
  .amdhsa_kernarg_size 104
  .amdhsa_user_sgpr_count 2
  .amdhsa_user_sgpr_kernarg_segment_ptr 1
  .amdhsa_system_sgpr_workgroup_id_x 1
  .amdhsa_float_denorm_mode_32 3
.end_amdhsa_kernel
"""

HEADER = """; Exphormer-style hybrid graph layer for N=50000, D=64, E=800000, expander degree 4 (one launch, one workgroup per CU).
;
;
; Phase A: workgroup c takes 3136 edges, sorts them by destination bucket (196 nodes) in LDS (rank atomics + scan),
; Hand-off: arrival counters in ws (cleared by this launch; the clears are announced on the zeroed debug counters).
"""

def generate(opts):
    global STFLAG, K1FLAG, LDF, RLF, PRIO, A0EARLY
    A0EARLY = opts.get('a0e', 1)
    PRIO = opts.get('prio', 2)
    F = {0: "", 1: " sc1", 2: " nt", 3: " sc0 sc1", 4: " sc1 nt", 5: " sc0 sc1 nt"}
    LDF = F[opts.get("ldf", 2)]
    K1FLAG = F[opts.get("k1f", 1)]
    RLF = F[opts.get("rlf", 1)]
    STFLAG = F[opts.get("stf", 1)]
    txt = HEADER + f"; @launch grid=({NB},1,1) block=(1024,1,1) lds={LDS}\n"
    body = A()
    n = emit(body, opts)
    txt += '.amdgcn_target "amdgcn-amd-amdhsa--gfx950"\n.text\n' + body.text()
    txt += '.section .rodata,"a"\n.p2align 6\n' + kd(n, 128, 102)
    return txt

if __name__ == "__main__":
    opts = {}
    out = "standalone__hybrid_graph_tf_exphormer__graph.s"
    for arg in sys.argv[1:]:
        if arg.startswith("-o"):
            out = arg[2:]
        elif "=" in arg:
            k, v = arg.split("="); opts[k] = int(v)
    open(out, "w").write(generate(opts))
    print("wrote", out)
```
